```python
import torch

def _softmax(x, axis=-1):
    return torch.softmax(x, dim=axis)
def _gelu(x):
    return torch.nn.functional.gelu(x, approximate="tanh")
def _silu(x):
    return torch.nn.functional.silu(x)
def _sigmoid(x):
    return torch.sigmoid(x)
def _layernorm(x, axis=-1, eps=1e-5):
    m = x.mean(dim=axis, keepdim=True)
    v = x.var(dim=axis, keepdim=True, unbiased=False)
    return (x - m) / torch.sqrt(v + eps)
def _scatter_add(tgt, idx, src, axis=0):
    return tgt.clone().index_add_(axis, idx, src)
def _segment_sum(src, seg, n):
    out = torch.zeros((n,) + src.shape[1:], dtype=src.dtype)
    return out.index_add_(0, seg, src)
def _pad(x, pw):
    flat = tuple(v for pair in reversed(pw) for v in pair)
    return torch.nn.functional.pad(x, flat)

kernel_name = 'standalone__edge_featured_mpnn_egc__graph'

def setup_inputs():

    _w = (lambda a: (lambda t: t.to(torch.bfloat16) if t.is_floating_point() else t)(torch.as_tensor(a)))
    N, deg, D, De = 10000, 64, 64, max(16, 1)
    E = N * deg
    return {
        "x": _w((lambda *s: torch.randn(*s, dtype=torch.bfloat16) * 0.2)(N, D)),
        "e_attr": _w((lambda *s: torch.randn(*s, dtype=torch.bfloat16) * 0.2)(E, De)),
        "src": _w((lambda lo, hi, *s: torch.randint(lo, hi, s))(0, N, E).to(torch.int64)),
        "dst": _w((lambda lo, hi, *s: torch.randint(lo, hi, s))(0, N, E).to(torch.int64)),
        "u_w": _w((lambda *s: torch.randn(*s, dtype=torch.bfloat16) * 0.05)(D, D)),
        "v_w": _w((lambda *s: torch.randn(*s, dtype=torch.bfloat16) * 0.05)(D, D)),
        "g_w": _w((lambda *s: torch.randn(*s, dtype=torch.bfloat16) * 0.2)(2 * D + De, D)),
    }

def reference(x, e_attr, src, dst, u_w, v_w, g_w):
    N, D = x.shape
    g_in = torch.concatenate([x[dst], x[src], e_attr], axis=-1)
    eta = _sigmoid(g_in @ g_w)
    hv = x @ v_w
    msg = eta * hv[src]
    agg = _segment_sum(msg, dst, N)
    return _silu(x @ u_w + agg)
```

```python
import sys, argparse

P = dict(
    a_nt=1, prio=2, epf=4, xq1=0, xq2=0, xq3=0, xq4=0, xq0=0, defer=0, la=2, f1=1, fp=1, ppos=0, psl=0, o_pol=1, cpf=1, forceslow=0, w1=1, rsl=0, rplain=1, wbl=0, abar=0,
    aslist=1, stamp=0, zoom=0, probe=-1, pop=0, abl=0, bench_n=0,
)
KNAME = "standalone__edge_featured_mpnn_egc__graph_kernel"
NW = 256; CH = 2500; BN = 40
GEN_OFF = 0
REC_OFF = 256; RSTR = 127*128; OSTR = 2176
OFF_OFF = REC_OFF + NW*RSTR
WS_USED = OFF_OFF + NW*OSTR

NSTR   = 768
L_CNT  = BN*NSTR
L_XST  = L_CNT + 256
L_RING = L_XST + 8192
L_GRP  = L_RING + 81920
LCAP   = 4992
KSMALL = 18
KBIG   = 30
GRPSZ  = LCAP//2 + 320
L_LIST = L_GRP + GRPSZ
L_FLG  = L_LIST - 8
LDS_B  = 163840
L_HIST = L_RING
L_START= L_RING + 2048
L_STAGE= L_RING + 3072
L_WST  = L_RING + 40960
assert NW*KSMALL + BN*7 <= LCAP - 32
assert L_LIST % 16 == 0 and L_LIST + LCAP*8 <= LDS_B and L_RING % 256 == 0 and L_XST % 256 == 0
assert L_STAGE + 16384 < 65536 and (CH + 2*256)//3*16 <= 126*128
MARK   = 0x7fffffff

main_out = []; cold_out = []; warm_out = []
CUR = [main_out]
INLOOP = [False]
def e(s=""): CUR[0].append(s)
def I(s):
    if INLOOP[0]:
        a = P['abl']
        if a & 1 and s.startswith("buffer_load") and f"s[{S_X}:" in s: s = "s_nop 0"
        if a & 2 and s.startswith("buffer_load") and f"s[{S_E}:" in s: s = "s_nop 0"
        if a & 8 and s.startswith("v_mfma"): s = "s_nop 0"
        if a & 16 and s.startswith("v_pk"): s = "s_nop 0"
        if a & 32 and (s.startswith("v_exp") or s.startswith("v_rcp")): s = "s_nop 0"
    CUR[0].append("    " + s)
def L(s): CUR[0].append(s + ":")
class cold:
    def __enter__(self): CUR[0] = cold_out
    def __exit__(self, *a): CUR[0] = main_out
class warm:
    def __enter__(self): CUR[0] = warm_out
    def __exit__(self, *a): CUR[0] = main_out
def vr(a, n): return f"v[{a}:{a+n-1}]"

STAMP_OFF = 0x1000000
def zst(z, i):
    if P['zoom'] == z: stamp(i, True)
def stamp(i, force=False):
    if P['zoom'] and not force and 2 <= i <= 10: return
    if P['stamp']:
        I("s_memrealtime s[82:83]") if (i in (0, 11) or P['stamp'] == 2) else I("s_memtime s[82:83]")
        I("s_waitcnt lgkmcnt(0)")
        I(f"s_mov_b32 s{84+i}, s82")
def stamp_flush():
    if P['stamp']:
        I("s_mov_b64 exec, 1")
        I(f"s_lshl_b32 s3, s2, 3")
        I(f"s_add_u32 s3, s3, s{S_WV}")
        I("s_lshl_b32 s3, s3, 6")
        I(f"s_add_u32 s3, s3, {STAMP_OFF}")
        I("v_mov_b32 v1, s3")
        for i in range(12):
            I(f"v_mov_b32 v2, s{84+i}")
            I(f"global_store_dword v1, v2, s[22:23] offset:{4*i}")

def dpp_scan(v, fill=()):
    fill = list(fill)
    def gap():
        n = 0
        while n < 2 and fill:
            I(fill.pop(0)); n += 1
        if n == 0: I("s_nop 1")
        elif n == 1: I("s_nop 0")
    for sh in (1,2,4,8):
        gap()
        I(f"v_add_u32_dpp v{v}, v{v}, v{v} row_shr:{sh} row_mask:0xf bank_mask:0xf bound_ctrl:0")
    gap()
    I(f"v_add_u32_dpp v{v}, v{v}, v{v} row_bcast:15 row_mask:0xa bank_mask:0xf")
    gap()
    I(f"v_add_u32_dpp v{v}, v{v}, v{v} row_bcast:31 row_mask:0xc bank_mask:0xf")
    for f in fill: I(f)

EA = 4; N8 = 14; ACC = 16; GRAW = 28; AG = [30, 32]; GR = 34; LE = 35; LX = 36; ER = 37
XR = 38; IDX = 42; EOP = 52; XB = 56; HV = 88; Z = [120, 152]; WZ = 184; WV = 224
REC = 120; DAD = 140; RNK = 156; BAS = 56; PAIR = 88
def rec(i): return REC + 4*(i//3) + i % 3
S_X, S_E, S_O, S_W = 24, 28, 32, 36
S_WV, S_RING, S_C, S_TAG, S_ONE, S_BIN, S_DONE, S_K, S_N, S_TOT, S_MORE = 40, 41, 96, 97, 98, 100, 101, 20, 21, 4, 5
S_NB0, S_NCNT, S_MK = 80, 81, 48
S_MT, S_SLOW, S_TMO, S_THR, S_FC = 8, 9, 10, 11, 78
SW = f"s[{S_W}:{S_W+3}]"; SX = f"s[{S_X}:{S_X+3}]"; SE = f"s[{S_E}:{S_E+3}]"
def mk(i): return f"s[{S_MK+2*i}:{S_MK+2*i+1}]"
def wz(s, n): return vr(WZ + (2*s+n)*4, 4)
def wv(s, n): return vr(WV + (2*s+n)*4, 4)

def sort_consts_a():
    I("v_and_b32 v7, 63, v0")
    I("v_lshrrev_b32 v8, 1, v0")
    I(f"s_lshl_b32 s3, s{S_BIN}, 3")
    I(f"s_add_u32 s3, s3, {OFF_OFF}")
    I(f"v_mul_u32_u24 v3, {OSTR}, v8")
    I("v_add_u32 v3, s3, v3")
    I("v_and_b32 v6, 1, v0")
    I(f"v_mul_u32_u24 v9, {CH}, v8")
    I(f"v_mul_u32_u24 v2, {RSTR}, v8")
    I("v_lshl_add_u32 v2, v6, 4, v2")
    I("v_mul_u32_u24 v6, 3, v6")
def sort_consts_b():
    I("v_mul_u32_u24 v10, 43, v7")
    I("v_lshrrev_b32 v10, 9, v10")
    I("v_mul_u32_u24 v11, 12, v10")
    I("v_sub_u32 v11, v7, v11")
    I(f"s_mul_i32 s3, s{S_WV}, 5")
    I("v_add_u32 v10, s3, v10")
    I("v_cmp_gt_u32 vcc, 60, v7")
    I(f"v_lshlrev_b32 v22, 2, v11")
    I(f"v_add_u32 v22, {L_GRP - L_LIST//16}, v22")
    I("v_cndmask_b32 v10, 50, v10, vcc")
    I(f"v_add_u32 v20, s{S_NB0}, v10")
    I("v_and_b32 v20, 63, v20")
    I("v_lshlrev_b32 v20, 2, v20")
    I(f"v_add_u32 v20, {L_XST}, v20")
    I(f"v_mul_u32_u24 v21, {NSTR}, v10")
    I(f"s_lshl_b32 s42, s{S_WV}, 8")
    I(f"s_add_u32 s42, s42, {L_LIST}")
    I("v_lshrrev_b32 v10, 3, v7")
    I(f"v_lshl_add_u32 v{LX}, v10, 3, s42")
    I("s_add_u32 s42, s42, 4")
    I("v_lshrrev_b32 v10, 1, v7")
    I(f"v_lshl_add_u32 v{LE}, v10, 3, s42")
    I(f"s_lshl_b32 s42, s{S_WV}, 4")
    I(f"s_add_u32 s42, s42, {L_GRP}")
    I("v_lshrrev_b32 v10, 5, v7")
    I(f"v_lshl_add_u32 v{GR}, v10, 3, s42")

def prefill(z=24):
    for i in range(4): I(f"v_mov_b32 v{16+i}, {MARK}")
    I(f"v_mov_b32 v10, {L_LIST}")
    I("v_lshl_add_u32 v10, v0, 4, v10")
    I("v_mov_b64 v[60:61], 0")
    I(f"v_mov_b32 v11, {L_GRP}")
    I(f"v_cmp_gt_u32 vcc, {GRPSZ//8}, v0")
    I("v_lshl_add_u32 v11, v0, 3, v11")
    for i in range(5): I(f"ds_write_b128 v10, v[16:19] offset:{8192*i}")
    I("s_mov_b64 exec, vcc")
    I("ds_write_b64 v11, v[60:61]")
    I("s_mov_b64 exec, -1")

def masks():
    I(f"v_min_i32 v5, s{S_K}, v4")
    I("v_sub_u32 v5, v5, v6")
    I(f"v_cmp_lt_i32 s[46:47], s{S_K}, v4")
    for i in range(15):
        I(f"v_cmp_lt_i32 {mk(i)}, {6*(i//3) + i % 3}, v5")

def rec_addr():
    I("v_lshrrev_b32 v4, 16, v12")
    I("v_and_b32 v1, 0xffff, v12")
    I("v_lshl_add_u32 v1, v1, 2, v2")
def rec_preset():
    for k in range(5): I(f"v_mov_b32 v{REC+4*k+3}, s{S_TAG}")
def rec_loads(pol=" sc1"):
    I("v_sub_u32 v5, v4, v6")
    for k in range(5):
        I(f"v_cmpx_lt_i32 vcc, {6*k}, v5")
        I(f"buffer_load_dwordx4 {vr(REC+4*k,4)}, v1, {SW}, 0 offen offset:{REC_OFF+32*k}{pol}")
    I("s_mov_b64 exec, -1")

def dad(i):
    return f"v_and_b32_sdwa v{DAD+i}, s{S_FC}, v{rec(i)} dst_sel:DWORD dst_unused:UNUSED_PAD src0_sel:DWORD src1_sel:BYTE_3"

def dma_tile(slot):
    r = [[f"s_add_u32 m0, s{S_RING}, {slot*5120 + 4096}", "s_nop 0",
          f"buffer_load_dwordx4 {vr(IDX+8,2)}, {SE}, 0 idxen offen lds"]]
    for i in range(4):
        r.append([f"s_add_u32 m0, s{S_RING}, {slot*5120 + i*1024}", "s_nop 0",
                  f"buffer_load_dwordx4 {vr(IDX+2*i,2)}, {SX}, 0 idxen offen lds"])
    return r
def idx_reads(k):
    r = [f"ds_read_b32 v{IDX+8}, v{LE} offset:{k*2048}"]
    r += [f"ds_read_b32 v{IDX+2*i}, v{LX} offset:{k*2048 + 64*i}" for i in range(4)]
    return r
def op_reads(slot):
    r = [f"ds_read_b128 {vr(XB+4*s,4)}, v{XR+s} offset:{slot*5120}" for s in range(4)]
    r.append(f"ds_read_b128 {vr(EOP,4)}, v{ER} offset:{slot*5120}")
    return r
def ea_reads(ag):
    return [f"ds_read2_b32 {vr(EA+2*(2*g+n),2)}, v{ag+g} offset0:{n} offset1:{n}" for g in range(2) for n in range(2)]
def flush(ag):
    return [f"ds_add_f64 v{ag+g}, {vr(ACC+2*(2*n+g),2)} offset:{256+256*n}" for n in range(2) for g in range(2)]
def z_mfmas(zb, order=(0,1,2,3,4)):
    r = []
    for s in order:
        for n in range(2):
            d = vr(zb+16*n,16)
            a = vr(XB+4*s,4) if s < 4 else vr(EOP,4)
            r.append(f"v_mfma_f32_32x32x16_bf16 {d}, {a}, {wz(s,n)}, {'0' if s == order[0] else d}")
    return r
def hv_mfmas():
    r = []
    for s in range(4):
        for n in range(2):
            d = vr(HV+16*n,16)
            r.append(f"v_mfma_f32_32x32x16_bf16 {d}, {vr(XB+4*s,4)}, {wv(s,n)}, {'0' if s==0 else d}")
    return r
def pairs():
    for n in range(2):
        for g in range(2):
            for j in range(4):
                yield 16*n + 8*g + 2*j, EA + 2*(2*g+n)

def t1_phase(zc, slow):
    if slow:
        I("s_waitcnt lgkmcnt(0)")
        for r, f in pairs(): I(f"v_pk_add_f32 {vr(zc+r,2)}, {vr(zc+r,2)}, {vr(f,2)}")
    ms = hv_mfmas()
    if P['prio']: I("s_setprio 1")
    for i in range(32):
        if i % 3 == 0 and i//3 < 8: I(ms[i//3])
        I(f"v_exp_f32 v{zc+i}, v{zc+i}")

def rest_phase(u, slow, first=False):
    zc, zn = Z[u], Z[1-u]
    la = P['la']
    if P['prio']: I("s_setprio 0")
    if P['zoom'] == 6: I("s_memrealtime s[82:83]")
    I(f"s_waitcnt vmcnt({1 if la == 5 else 0 if la else 5}) lgkmcnt(0)")
    if P['zoom'] == 6:
        I("s_mov_b32 m0, s86")
        I("s_add_u32 s86, s86, 1")
        I("v_writelane_b32 v12, s82, m0")
    for o in op_reads(1-u): I(o)
    g1 = flush(AG[1-u]) + [f"ds_read_b64 {vr(GRAW,2)}, v{GR} offset:{128*(1+u)}"]
    dm = dma_tile(u if la else 1-u)
    if la == 5: dm = dm[1:] + dma_tile(1-u)[:1]
    if la == 8: dm = dm[1:] + dm[:1]
    n1 = {0: 0, 1: 5, 2: 0, 3: 1, 4: 3, 5: 0, 6: 0, 7: 0, 8: 0}[la]
    for i, o in enumerate(g1):
        if i < n1: I(dm[i][0])
        I(o)
        if i < n1: I(dm[i][2])
    e(".p2align 3")
    for r, f in pairs():
        if slow: I(f"v_pk_add_f32 {vr(zc+r,2)}, {vr(zc+r,2)}, s[{S_ONE}:{S_ONE+1}]")
        else:    I(f"v_pk_fma_f32 {vr(zc+r,2)}, {vr(zc+r,2)}, {vr(f,2)}, s[{S_ONE}:{S_ONE+1}]")
    ms = z_mfmas(zn)
    I("s_waitcnt lgkmcnt(5)")
    if P['prio']: I("s_setprio 1")
    for i in range(32):
        if i % 3 == 0 and i//3 < 10:
            k = i//3
            ins = (la == 6 and k % 2 == 1) or (la == 7 and k == 5)
            if ins: I(dm[0][0])
            I(ms[k])
            if ins: I(dm.pop(0)[2])
            if k == 9: I("s_waitcnt lgkmcnt(0)")
        I(f"v_rcp_f32 v{zc+i}, v{zc+i}")
        if i == 29:
            I(f"v_lshl_add_u64 {vr(AG[1-u],2)}, {vr(GRAW,2)}, 0, {vr(N8,2)}")
    if P['prio']: I("s_setprio 0")
    ix = idx_reads((3 if la else 4)+u)
    if la == 5: ix = ix[1:] + idx_reads(4+u)[:1]
    if la == 8: ix = ix[1:] + ix[:1]
    other = ea_reads(AG[1-u]) + ix
    for d in dm[n1:]:
        I(d[0]); I(other.pop(0)); I(d[2])
    for o in other: I(o)
    I(f"s_sub_u32 s{S_N}, s{S_N}, 1")
    e(".p2align 3")
    for j in range(4):
        for n in range(2):
            for g in range(2):
                r = 16*n + 8*g + 2*j
                a = ACC + 2*(2*n+g)
                if j == 0: I(f"v_pk_mul_f32 {vr(a,2)}, {vr(zc+r,2)}, {vr(HV+r,2)}")
                else:      I(f"v_pk_fma_f32 {vr(a,2)}, {vr(zc+r,2)}, {vr(HV+r,2)}, {vr(a,2)}")
    for a in range(ACC, ACC+8, 2): I(f"v_add_f32 v{a}, v{a}, v{a+1}")
    if u == 1 and not P['bench_n']:
        I(f"v_add_u32 v{LX}, 4096, v{LX}")
        I(f"v_add_u32 v{LE}, 4096, v{LE}")
        I(f"v_add_u32 v{GR}, 256, v{GR}")
    for a in range(ACC, ACC+8, 2): I(f"v_cvt_f64_f32 {vr(a,2)}, v{a}")

def main_loop(tag, slow):
    INLOOP[0] = True
    L(f"{tag}_loop")
    rest_phase(0, slow)
    I("s_cbranch_scc1 B_exit0")
    t1_phase(Z[1], slow)
    rest_phase(1, slow)
    I("s_cbranch_scc1 B_exit1")
    t1_phase(Z[0], slow)
    I(f"s_branch {tag}_loop")
    INLOOP[0] = False

def tr_quad(dst, areg, row0):
    return [f"ds_read_b64_tr_b16 {vr(dst+2*jj,2)}, v{areg} offset:{(row0+4*jj)*128}" for jj in range(2)]

def kernel():
    nt = " nt" if P['a_nt'] else ""
    DST, SRC, BAD, RK, TMP, WB = 120, 128, 136, 144, 152, 160
    TR0, TR1 = 26, 27
    e(f".globl {KNAME}")
    e(".p2align 8")
    e(f".type {KNAME},@function")
    L(KNAME)
    I(f"s_cmp_ge_u32 s2, {NW}")
    I("s_cbranch_scc1 B_end")
    stamp(0); stamp(1)
    I("s_load_dwordx16 s[4:19], s[0:1], 0")
    I("s_load_dwordx2 s[22:23], s[0:1], 72")
    I("v_lshrrev_b32 v1, 6, v0")
    if P['cpf']:
        I("s_getpc_b64 s[46:47]")
        L("B_pc")
        I("v_mul_u32_u24 v55, 54, v1")
        I("v_sub_u32 v55, v0, v55")
        I("v_lshlrev_b32 v55, 7, v55")
        I("v_min_u32 v55, B_warm_end-B_pc, v55")
        I("s_mov_b64 exec, 0x3ff")
        I("global_load_dword v55, v55, s[46:47]")
        I("s_mov_b64 exec, -1")
    I(f"s_mul_i32 s3, s2, {CH*4}")
    I(f"v_readfirstlane_b32 s{S_WV}, v1")
    I("v_lshlrev_b32 v23, 4, v0")
    I("v_add_u32 v24, s3, v23")
    I("s_add_u32 s3, s3, 8192")
    I("v_lshl_add_u32 v25, v0, 2, s3")
    I(f"s_movk_i32 s3, {CH-2048}")
    I("v_cmp_gt_u32 s[44:45], s3, v0")
    I("v_and_b32 v7, 63, v0")
    I("v_mov_b32 v16, 0")
    I("v_lshlrev_b32 v10, 2, v0")
    I("v_lshlrev_b32 v5, 2, v7")
    I(f"ds_write_b32 v10, v16 offset:{L_HIST}")
    I(f"ds_write_b32 v5, v16 offset:{L_CNT}")
    I(f"s_and_b32 s{S_BIN}, s2, 7")
    I(f"s_lshl_b32 s{S_BIN}, s{S_BIN}, 5")
    I("s_lshr_b32 s3, s2, 3")
    I(f"s_add_u32 s{S_BIN}, s{S_BIN}, s3")
    I(f"s_mul_i32 s{S_NB0}, s{S_BIN}, 625")
    I(f"s_add_u32 s{S_NCNT}, s{S_NB0}, 640")
    I(f"s_add_u32 s{S_NB0}, s{S_NB0}, 15")
    I(f"s_lshr_b32 s{S_NB0}, s{S_NB0}, 4")
    I("v_and_b32 v13, 7, v7")
    I("v_lshrrev_b32 v11, 4, v7")
    I("v_xor_b32 v12, v13, v11")
    I(f"v_lshlrev_b32 v{IDX+1}, 4, v12")
    I("v_and_b32 v12, 16, v0")
    I("v_lshlrev_b32 v12, 2, v12")
    I("v_xor_b32 v28, v23, v12")
    I(f"s_lshl_b32 s3, s{S_WV}, 8")
    I("s_add_u32 s3, s3, 16384")
    I("v_lshl_add_u32 v29, v7, 4, s3")
    I("v_add_u32 v54, 8192, v23")
    I(f"s_mov_b32 s{S_X+2}, 10000")
    I(f"s_mov_b32 s{S_X+3}, 0x20000")
    I(f"s_mov_b32 s{S_W+2}, {WS_USED}")
    I(f"s_mov_b32 s{S_W+3}, 0x20000")
    zst(3, 2)
    I("s_waitcnt lgkmcnt(0)")
    zst(3, 3)
    I(f"global_load_dwordx4 {vr(DST,4)}, v24, s[10:11]{nt}")
    I("s_mov_b64 exec, s[44:45]")
    I(f"global_load_dword v{DST+4}, v25, s[10:11]{nt}")
    I("s_mov_b64 exec, -1")
    I(f"s_load_dword s{S_TAG}, s[22:23], {GEN_OFF}")
    if P['abar'] == 0: I("s_barrier")
    I(f"global_load_dwordx4 {vr(SRC,4)}, v24, s[8:9]{nt}")
    I("s_mov_b64 exec, s[44:45]")
    I(f"global_load_dword v{SRC+4}, v25, s[8:9]{nt}")
    I("s_mov_b64 exec, -1")
    if P['abar'] == 1: I("s_barrier")
    def wb_loads(areg):
        I(f"global_load_dwordx4 {vr(WB,4)}, v{areg}, s[16:17]")
        I("s_mov_b64 exec, 0xffff")
        I(f"global_load_dwordx4 {vr(WB+4,4)}, v29, s[16:17]")
        I("s_mov_b64 exec, -1")
    n1 = 0
    if not P['wbl']:
        wb_loads(54); n1 = 2
    else:
        I("v_mov_b32 v67, v54")
    I(f"s_mov_b32 s{S_X}, s4")
    I(f"s_and_b32 s{S_X+1}, s5, 0xffff")
    I(f"s_or_b32 s{S_X+1}, s{S_X+1}, {128<<16}")
    I(f"s_mov_b32 s{S_W}, s22")
    I(f"s_and_b32 s{S_W+1}, s23, 0xffff")
    I(f"s_and_b32 s42, s{S_WV}, 1")
    I("s_lshl_b32 s42, s42, 6")
    I("v_xor_b32 v30, s42, v29")
    I(f"s_lshl_b32 s3, s{S_WV}, 3")
    I(f"s_add_u32 s3, s{S_NB0}, s3")
    I(f"s_cmp_gt_u32 s{S_WV}, 4")
    I("s_cselect_b32 s3, 0x100000, s3")
    I("v_lshrrev_b32 v12, 3, v7")
    I("v_add_u32 v32, s3, v12")
    I(f"v_xor_b32 v33, s42, v{IDX+1}")
    I("s_and_b32 s3, s2, -8")
    I(f"s_add_u32 s3, s3, s{S_WV}")
    I("s_mul_i32 s3, s3, 40")
    I("v_add_u32 v52, s3, v7")
    I(f"s_lshl_b32 s43, s{S_WV}, 10")
    I(f"v_lshl_add_u32 v15, v12, 3, s{S_WV}")
    I("v_add_u32 v15, 64, v15")
    I("v_lshlrev_b32 v31, 4, v13")
    I("v_lshl_add_u32 v31, v15, 7, v31")
    I(f"s_lshl_b32 s3, s{S_WV}, 7")
    I("v_lshl_add_u32 v14, v7, 3, s3")
    I(f"s_mul_i32 s{S_RING}, s{S_WV}, 10240")
    I(f"s_add_u32 s{S_RING}, s{S_RING}, {L_RING}")
    I("v_bfe_u32 v10, v7, 2, 1")
    I("v_and_b32 v13, 3, v7")
    I("v_lshl_add_u32 v10, v10, 4, v13")
    I("v_bfe_u32 v11, v7, 3, 2")
    I("v_lshl_add_u32 v10, v11, 2, v10")
    I("v_lshrrev_b32 v11, 5, v7")
    I("v_bfe_u32 v12, v10, 1, 3")
    I("v_xor_b32 v12, v12, v11")
    I(f"v_lshl_add_u32 v1, v10, 7, s{S_RING}")
    for s in range(4):
        I(f"v_xor_b32 v{XR+s}, {2*s}, v12")
        I(f"v_lshl_add_u32 v{XR+s}, v{XR+s}, 4, v1")
    I("v_bfe_u32 v12, v10, 3, 1")
    I("v_xor_b32 v12, v12, v11")
    I("v_lshlrev_b32 v12, 4, v12")
    I("v_lshl_add_u32 v12, v10, 5, v12")
    I(f"s_add_u32 s42, s{S_RING}, 4096")
    I(f"v_add_u32 v{ER}, s42, v12")
    I("v_bfe_u32 v12, v7, 2, 2")
    I("v_lshl_add_u32 v12, v11, 3, v12")
    I("v_lshlrev_b32 v12, 7, v12")
    I("v_lshl_add_u32 v12, v13, 3, v12")
    I("v_bfe_u32 v13, v7, 4, 1")
    I("v_lshl_add_u32 v12, v13, 5, v12")
    I("v_bfe_u32 v13, v7, 3, 1")
    I("v_lshl_add_u32 v12, v13, 6, v12")
    I(f"v_add_u32 v{TR0}, {L_WST}, v12")
    I(f"v_xor_b32 v{TR1}, 64, v{TR0}")
    I(f"s_bfe_u32 s{S_MT}, s{S_WV}, 0x10001")
    I(f"s_lshl_b32 s3, s{S_MT}, 12")
    I(f"s_sub_u32 s3, s3, s{S_RING}")
    I(f"s_add_u32 s3, s3, {L_XST}")
    for s in range(4): I(f"v_add_u32 v{56+s}, s3, v{XR+s}")
    I(f"s_lshr_b32 s20, s{S_WV}, 2")
    I(f"s_and_b32 s21, s{S_WV}, 1")
    I("s_mul_i32 s3, s20, 26624")
    I("s_lshl_b32 s42, s21, 6")
    I(f"v_xor_b32 v24, s42, v{TR0}")
    I("v_add_u32 v24, s3, v24")
    I(f"v_mul_u32_u24 v54, {16*NSTR}, v11")
    if P['w1']:
        prefill(26)
        sort_consts_b()
    for j in range(4): I(f"v_lshl_or_b32 v{62+j}, v0, 2, {j}")
    I("v_mov_b32 v11, 10923")
    I("v_add_u32 v66, 2048, v0")
    I("v_lshlrev_b32 v1, 4, v7")
    def xq(name):
        n = P[name]
        if not n: return 0
        I(f"s_mov_b32 exec_lo, {hex(((1<<n)-1) & 0xffffffff)}")
        I(f"s_mov_b32 exec_hi, {hex(((1<<n)-1) >> 32)}")
        I(f"buffer_load_dword v53, v52, {SX}, 0 idxen")
        I("s_mov_b64 exec, -1")
        I(f"v_add_u32 v52, {n}, v52")
        return 1
    zst(3, 4)
    I(f"s_waitcnt vmcnt({2+n1})")
    stamp(2); zst(3, 5)
    for j in range(5): I(f"v_mul_u32_u24 v{TMP+j}, 214749, v{DST+j}")
    for j in range(5): I(f"v_lshrrev_b32 v{TMP+j}, 21, v{TMP+j}")
    for j in range(5): I(f"v_and_b32 v{BAD+j}, -4, v{TMP+j}")
    for j in range(4): I(f"ds_add_rtn_u32 v{RK+j}, v{BAD+j}, v11 offset:{L_HIST}")
    I("s_mov_b64 exec, s[44:45]")
    I(f"ds_add_rtn_u32 v{RK+4}, v{BAD+4}, v11 offset:{L_HIST}")
    I("s_mov_b64 exec, -1")
    if P['wbl']:
        wb_loads(67); n1 += 2
    I(f"s_add_u32 m0, s43, {L_XST}")
    I("s_nop 0")
    I(f"buffer_load_dwordx4 v[32:33], {SX}, 0 idxen offen lds")
    for base, off in ((16, 0), (12, 26624), (14, 18432)):
        I(f"s_add_u32 m0, s43, {L_WST+off}")
        I("s_nop 0")
        I(f"global_load_lds_dwordx4 v28, s[{base}:{base+1}]")
    n1 += 4
    for j in range(5): I(f"v_lshl_or_b32 v{DST+j}, v{DST+j}, 26, v{62+j}")
    I("s_waitcnt lgkmcnt(0)")
    I("s_barrier")
    zst(3, 6); zst(4, 2)
    I(f"ds_read_b128 v[168:171], v1 offset:{L_HIST}")
    I("s_mov_b64 exec, 0xffff")
    I(f"ds_read_b64 v[180:181], v14 offset:{L_HIST}")
    I("s_mov_b64 exec, -1")
    nx0 = xq('xq0'); n1 += nx0
    I(f"s_mul_i32 s{S_TAG}, s{S_TAG}, 1664525")
    I(f"s_add_u32 s{S_TAG}, s{S_TAG}, 1013904223")
    I(f"s_mul_i32 s42, s2, {OSTR}")
    I(f"s_add_u32 s42, s42, {OFF_OFF}")
    I("s_waitcnt lgkmcnt(0)")
    zst(4, 3)
    for j in range(4): I(f"v_add_u32 v{168+j}, 21846, v{168+j}")
    for j in range(4): I(f"v_lshrrev_b32 v{168+j}, 15, v{168+j}")
    I("v_add_u32 v173, v168, v169")
    I("v_add_u32 v174, v173, v170")
    I("v_add_u32 v175, v174, v171")
    I("v_mov_b32 v172, v175")
    fill  = [f"v_mul_u32_u24 v{180+j}, 6, v{180+j}" if False else f"v_lshl_add_u32 v{180+j}, v{180+j}, 1, v{180+j}" for j in range(2)]
    fill += [f"v_lshrrev_b32 v{180+j}, 15, v{180+j}" for j in range(2)]
    fill += [f"v_mov_b32 v169, s{S_TAG}", f"v_mov_b32 v171, s{S_TAG}"]
    fill += [f"v_lshrrev_b32 v{RK+j}, 13, v{RK+j}" for j in range(5)]
    dpp_scan(172, fill)
    I("v_sub_u32 v176, v172, v175")
    I("v_readlane_b32 s3, v172, 63")
    I("v_add_lshl_u32 v177, v176, v168, 2")
    I("v_add_lshl_u32 v178, v176, v173, 2")
    I("v_add_lshl_u32 v179, v176, v174, 2")
    I("v_lshlrev_b32 v176, 2, v176")
    zst(4, 4)
    I(f"ds_write_b128 v1, v[176:179] offset:{L_START}")
    for j in range(5): I(f"ds_read_b32 v{TMP+j}, v{BAD+j} offset:{L_START}")
    I("s_mov_b64 exec, 0xffff")
    I(f"ds_read_b64 v[182:183], v14 offset:{L_START}")
    I("s_mov_b64 exec, -1")
    I("s_add_u32 s3, s3, 7")
    I("s_lshr_b32 s3, s3, 3")
    I("v_cmp_gt_u32 vcc, s3, v15")
    I("v_lshlrev_b32 v15, 1, v14")
    I("s_waitcnt lgkmcnt(0)")
    zst(4, 5)
    for j in range(5): I(f"v_add_lshl_u32 v{TMP+j}, v{TMP+j}, v{RK+j}, 2")
    I("v_lshl_or_b32 v168, v180, 16, v182")
    I("v_lshl_or_b32 v170, v181, 16, v183")
    I("s_mov_b64 exec, 0xffff")
    I(f"buffer_store_dwordx4 v[168:171], v15, {SW}, s42 offen sc1")
    I("s_mov_b64 exec, -1")
    zst(4, 6)
    I(f"s_waitcnt vmcnt({n1+1})")
    zst(4, 7)
    for j in range(5): I(f"v_lshl_or_b32 v{DST+j}, v{SRC+j}, 12, v{DST+j}")
    for j in range(4): I(f"ds_write_b32 v{TMP+j}, v{DST+j} offset:{L_STAGE}")
    I("s_mov_b64 exec, s[44:45]")
    I(f"ds_write_b32 v{TMP+4}, v{DST+4} offset:{L_STAGE}")
    I("s_mov_b64 exec, -1")
    nx1 = xq('xq1')
    I(f"s_mul_i32 s3, s2, {RSTR}")
    I(f"s_add_u32 s3, s3, {REC_OFF}")
    I("s_waitcnt lgkmcnt(0)")
    zst(4, 8)
    I("s_barrier")
    zst(3, 7); zst(4, 9)
    I(f"ds_read_b128 v[120:123], v23 offset:{L_STAGE}")
    I(f"ds_read_b128 v[124:127], v31 offset:{L_STAGE}")
    I("s_waitcnt lgkmcnt(1)")
    I(f"v_mov_b32 v123, s{S_TAG}")
    I(f"buffer_store_dwordx4 v[120:123], v23, {SW}, s3 offen sc1")
    I("s_waitcnt lgkmcnt(0)")
    I(f"v_mov_b32 v127, s{S_TAG}")
    I("s_mov_b64 exec, vcc")
    I(f"buffer_store_dwordx4 v[124:127], v31, {SW}, s3 offen sc1")
    I("s_mov_b64 exec, -1")
    stamp(3); zst(3, 8); zst(4, 10)
    nx2 = xq('xq2')
    I(f"s_mov_b32 s{S_C}, 0xbfb8aa3b")
    I(f"v_add_u32 v30, {L_WST}, v30")
    I(f"v_add_u32 v31, {L_WST+8192}, v28")
    I(f"s_waitcnt vmcnt({3+nx0+nx1+nx2})")
    for j in range(8):
        I(f"v_and_b32 v{141+2*j}, 0xffff0000, v{WB+j}")
        I(f"v_lshlrev_b32 v{140+2*j}, 16, v{WB+j}")
    for j in range(16): I(f"v_mul_f32 v{140+j}, s{S_C}, v{140+j}")
    for j in range(8):  I(f"v_cvt_pk_bf16_f32 v{WB+j}, v{140+2*j}, v{141+2*j}")
    I(f"ds_write_b128 v31, {vr(WB,4)}")
    I("s_mov_b64 exec, 0xffff")
    I(f"ds_write_b128 v30, {vr(WB+4,4)}")
    I("s_mov_b64 exec, -1")
    I("s_waitcnt lgkmcnt(0)")
    I("s_barrier")
    zst(5, 2)
    for s in range(4):
        I(f"ds_read_b128 {vr(104+4*s,4)}, v{56+s}")
        for o in tr_quad(72+4*s, 24, 16*s): I(o)
    sort_consts_a()
    rec_preset()
    I(f"v_and_b32 v{N8}, 31, v7")
    I(f"v_lshlrev_b32 v{N8}, 3, v{N8}")
    I(f"v_mov_b32 v{N8+1}, v{N8}")
    I(f"s_mul_i32 s43, s{S_MT}, {32*NSTR}")
    I(f"v_add3_u32 v54, v54, s43, v{N8}")
    poll = f"buffer_load_dwordx2 v[12:13], v3, {SW}, 0 offen sc1"
    if P['ppos'] == 0: I(poll)
    I("s_waitcnt lgkmcnt(0)")
    nx4 = xq('xq4')
    wl = []
    for s in range(5):
        for n in range(2): wl += tr_quad(WZ+(2*s+n)*4, (TR0, TR1)[n], 64+16*s)
    for s in range(4):
        for n in range(2): wl += tr_quad(WV+(2*s+n)*4, (TR0, TR1)[n], 144+16*s)
    for s in range(4):
        I(f"v_mfma_f32_32x32x16_bf16 v[88:103], {vr(104+4*s,4)}, {vr(72+4*s,4)}, {'0' if s==0 else 'v[88:103]'}")
        for o in wl[3*s:3*s+3]: I(o)
    for i in range(12, 36):
        if i % 8 == 4: I("s_waitcnt lgkmcnt(4)")
        I(wl[i])
    if P['psl']: I(f"s_sleep {P['psl']}")
    if P['ppos'] == 1: I(poll)
    zst(5, 3)
    zst(3, 9); zst(5, 4)
    I(f"s_mov_b32 s{S_SLOW}, {P['forceslow']}")
    I(f"s_mov_b32 s{S_TMO}, 0x40000")
    I(f"s_mov_b32 s{S_DONE}, 0")
    I("s_mov_b64 s[44:45], s[20:21]")
    I(f"s_mov_b32 s{S_K}, {KBIG}")
    I(f"s_waitcnt vmcnt({nx4})")
    L("B_poll")
    I(f"v_cmpx_ne_u32 vcc, s{S_TAG}, v13")
    I("s_cbranch_execz B_polled")
    I(f"s_sub_u32 s{S_TMO}, s{S_TMO}, 1")
    I("s_cbranch_scc1 B_nopoll")
    I(poll)
    I("s_waitcnt vmcnt(0)")
    I("s_branch B_poll")
    L("B_nopoll")
    I(f"s_mov_b32 s{S_TMO}, 0")
    I("v_mov_b32 v12, 0")
    L("B_polled")
    I("s_mov_b64 exec, -1")
    stamp(4); zst(3, 10); zst(5, 5)
    if P['stamp'] == 2:
        I(f"s_sub_u32 s79, 0x40000, s{S_TMO}")
        I("s_lshl_b32 s79, s79, 8")
        I(f"s_add_u32 s79, s79, s{S_TMO}")
    rec_addr()
    if P['rsl']: I(f"s_sleep {P['rsl']}")
    rec_loads("" if P['rplain'] else " sc1")
    I(f"s_cmp_eq_u32 s{S_MT}, 0")
    I("s_cselect_b32 exec_hi, -1, 0")
    I("s_cselect_b64 s[42:43], -1, 0")
    I("s_cmp_eq_u32 s44, 0")
    I("s_cbranch_scc1 B_xa")
    I("s_lshl_b32 s45, s45, 8")
    I("v_add_u32 v54, s45, v54")
    for r in range(16): I(f"v_cvt_f64_f32 {vr(56+2*r,2)}, v{88+r}")
    I("s_waitcnt lgkmcnt(4)")
    for r in range(8): I(f"ds_write_b64 v54, {vr(56+2*r,2)} offset:{256+NSTR*r}")
    I("s_mov_b64 exec, s[42:43]")
    I("s_waitcnt lgkmcnt(4)")
    for r in range(8, 16): I(f"ds_write_b64 v54, {vr(56+2*r,2)} offset:{256+NSTR*r}")
    I("s_branch B_xa_done")
    L("B_xa")
    I("s_lshl_b32 s45, s45, 2")
    I("v_add_u32 v54, s45, v54")
    for r in range(16): I(f"v_mul_f32 v{72+r}, s{S_C}, v{88+r}")
    for r in range(16): I(f"v_exp_f32 v{56+r}, v{72+r}")
    I("v_max_f32 v88, |v72|, |v73|")
    for r in range(1, 8): I(f"v_max3_f32 v88, |v{72+2*r}|, |v{73+2*r}|, v88")
    I("v_cmp_lt_f32 vcc, 0x42700000, v88")
    I("v_mov_b32 v89, 1")
    I(f"v_mov_b32 v90, {L_FLG}")
    I("s_waitcnt lgkmcnt(4)")
    for r in range(8): I(f"ds_write_b32 v54, v{56+r} offset:{NSTR*r}")
    I("s_mov_b64 exec, s[42:43]")
    I("s_waitcnt lgkmcnt(4)")
    for r in range(8, 16): I(f"ds_write_b32 v54, v{56+r} offset:{NSTR*r}")
    I("s_mov_b64 exec, vcc")
    I("ds_write_b32 v90, v89")
    L("B_xa_done")
    I("s_mov_b64 exec, -1")
    masks()
    if not P['w1']:
        prefill()
        sort_consts_b()
    I(f"s_mov_b32 s{S_E}, s6")
    I(f"s_and_b32 s{S_E+1}, s7, 0xffff")
    I(f"s_or_b32 s{S_E+1}, s{S_E+1}, {32<<16}")
    I(f"s_mov_b32 s{S_E+2}, 640000")
    I(f"s_mov_b32 s{S_E+3}, 0x20000")
    I(f"s_mov_b32 s{S_O}, s18")
    I(f"s_and_b32 s{S_O+1}, s19, 0xffff")
    I(f"s_mov_b32 s{S_O+2}, 1280000")
    I(f"s_mov_b32 s{S_O+3}, 0x20000")
    I(f"s_movk_i32 s{S_FC}, 0xfc")
    I(f"s_and_b32 s{S_THR}, s{S_NB0}, 63")
    I(f"s_cmp_gt_u32 s{S_THR}, 25")
    I(f"s_cselect_b32 s{S_THR}, 0, s{S_THR}")
    I(f"s_add_u32 s{S_THR}, s{S_THR}, {P['epf']}")
    I(f"s_lshl_b32 s{S_THR}, s{S_THR}, 2")
    I(f"s_mov_b32 s{S_ONE}, 1.0")
    I(f"s_mov_b32 s{S_ONE+1}, 1.0")
    I(f"v_xor_b32 v{IDX+3}, 64, v{IDX+1}")
    I(f"v_mov_b32 v{IDX+5}, v{IDX+1}")
    I(f"v_mov_b32 v{IDX+7}, v{IDX+3}")
    I("v_lshrrev_b32 v11, 4, v7")
    I("v_xor_b32 v11, v7, v11")
    I("v_and_b32 v11, 1, v11")
    I(f"v_lshlrev_b32 v{IDX+9}, 4, v11")
    zst(5, 6)
    nx3 = xq('xq3')
    I(f"s_waitcnt vmcnt({nx3}) lgkmcnt(2)")
    L("B_verify")
    zst(5, 7)
    I(f"v_min3_u32 v10, v{REC+3}, v{REC+7}, v{REC+11}")
    I(f"v_max3_u32 v11, v{REC+3}, v{REC+7}, v{REC+11}")
    I(f"v_min3_u32 v10, v{REC+15}, v{REC+19}, v10")
    I(f"v_max3_u32 v11, v{REC+15}, v{REC+19}, v11")
    I(f"v_cmp_ne_u32 vcc, s{S_TAG}, v10")
    I(f"v_cmp_ne_u32 s[42:43], s{S_TAG}, v11")
    I("s_or_b64 exec, vcc, s[42:43]")
    I("s_cbranch_scc0 B_sort")
    I(f"s_sub_u32 s{S_TMO}, s{S_TMO}, 1")
    I("s_cbranch_scc1 B_giveup")
    rec_loads()
    I("s_waitcnt vmcnt(0)")
    I("s_branch B_verify")
    with cold():
        L("B_giveup")
        I("s_mov_b64 exec, -1")
        I(f"s_mov_b32 s{S_TMO}, 0")
        I("v_mov_b32 v4, 0")
        masks()
        I("s_branch B_sort")
    L("B_sort")
    I("s_mov_b64 exec, -1")
    stamp(5); zst(1, 2); zst(5, 8)
    if P['zoom'] == 5:
        I(f"s_sub_u32 s93, 0x40000, s{S_TMO}")
        I("s_add_u32 s93, s93, s85")
    if P['stamp'] == 2: I(f"s_sub_u32 s85, s79, s{S_TMO}")
    I("v_mov_b32 v11, 1")
    for i in range(12): I(dad(i))
    for i in range(12):
        I(f"s_mov_b64 exec, {mk(i)}")
        I(f"ds_add_rtn_u32 v{RNK+i}, v{DAD+i}, v11 offset:{L_CNT}")
    I("s_mov_b64 exec, -1")
    I(f"s_or_b64 vcc, s[46:47], {mk(12)}")
    I("s_cbranch_scc1 B_p1x")
    with warm():
        L("B_p1x")
        I("s_waitcnt lgkmcnt(0)")
        for i in range(12, 15): I(dad(i))
        I(f"v_mov_b32 v10, {L_FLG+4}")
        for i in range(12, 15):
            I(f"s_mov_b64 exec, {mk(i)}")
            I(f"ds_add_rtn_u32 v{RNK+i}, v{DAD+i}, v11 offset:{L_CNT}")
        I("s_mov_b64 exec, s[46:47]")
        I("ds_write_b32 v10, v11")
        I("s_mov_b64 exec, -1")
        I("s_branch B_p1done")
    L("B_p1done")
    I("v_lshlrev_b32 v10, 2, v7")
    I(f"v_mov_b32 v24, {L_FLG}")
    I(f"v_add_u32 v25, {L_XST}, v10")
    pm = ["s[12:13]", "s[14:15]", "s[16:17]", "s[18:19]", "s[42:43]", "s[44:45]", "s[6:7]", "vcc"]
    if P['epf']:
        for i in range(8): I(f"v_cmp_gt_u32 {pm[i]}, s{S_THR}, v{DAD+i}")
    for i in range(8):
        I(f"v_and_b32 v{PAIR+2*i+1}, 0xfff, v{rec(i)}")
        I(f"v_add_u32 v{PAIR+2*i+1}, v{PAIR+2*i+1}, v9")
    if P['epf']:
        for i in range(8):
            I(f"s_and_b64 exec, {pm[i]}, {mk(i)}")
            I(f"buffer_load_dword v53, v{PAIR+2*i+1}, {SE}, 0 idxen")
        I("s_mov_b64 exec, -1")
    I("s_waitcnt lgkmcnt(0)")
    zst(1, 3)
    I("s_barrier")
    zst(1, 4)
    I(f"ds_read_b32 v12, v10 offset:{L_CNT}")
    I("ds_read_b64 v[18:19], v24")
    for i in range(8, 12):
        I(f"v_and_b32 v{PAIR+2*i+1}, 0xfff, v{rec(i)}")
        I(f"v_add_u32 v{PAIR+2*i+1}, v{PAIR+2*i+1}, v9")
    I("s_waitcnt lgkmcnt(0)")
    I("v_add_u32 v13, 7, v12")
    I("v_and_b32 v13, -8, v13")
    I("v_mov_b32 v1, v13")
    dpp_scan(1, [f"v_bfe_u32 v{PAIR+2*i}, v{rec(i)}, 12, 14" for i in range(12)])
    I(f"v_add_u32 v12, {L_LIST//8}, v1")
    I(f"v_readlane_b32 s{S_TOT}, v1, 63")
    I("v_sub_u32 v13, v12, v13")
    I("ds_write2_b32 v25, v13, v12 offset1:1")
    I("ds_read2_b32 v[16:17], v20 offset1:1")
    for i in range(12): I(f"ds_read_b32 v{BAS+i}, v{DAD+i} offset:{L_XST}")
    I(f"v_readfirstlane_b32 s{S_MORE}, v19")
    I(f"v_readfirstlane_b32 s3, v18")
    I(f"s_add_u32 s{S_N}, s{S_TOT}, {31+7*32}")
    I(f"s_lshr_b32 s{S_N}, s{S_N}, 5")
    I(f"s_sub_u32 s{S_N}, s{S_N}, s{S_WV}")
    I(f"s_lshr_b32 s{S_N}, s{S_N}, 3")
    if P['bench_n']: I(f"s_mov_b32 s{S_N}, {P['bench_n']}")
    I(f"s_or_b32 s{S_SLOW}, s{S_SLOW}, s3")
    I(f"s_cmp_gt_u32 s{S_TOT}, {LCAP-32}")
    I("s_cbranch_scc1 B_toobig")
    with cold():
        L("B_toobig")
        I("s_waitcnt lgkmcnt(0)")
        I("s_barrier")
        I("v_mov_b32 v11, 0")
        I(f"ds_write_b32 v10, v11 offset:{L_CNT}")
        I(f"s_mov_b32 s{S_K}, {KSMALL}")
        masks()
        I("s_waitcnt lgkmcnt(0)")
        I("s_barrier")
        I("s_branch B_sort")
    zst(1, 5)
    I("s_waitcnt lgkmcnt(12)")
    I("v_lshrrev_b32 v16, 1, v16")
    I("v_lshrrev_b32 v17, 1, v17")
    I("v_add_u32 v16, v16, v22")
    I(f"v_add_u32 v17, {L_GRP - L_LIST//16}, v17")
    I("v_cmp_lt_u32 s[42:43], v16, v17")
    I("v_add_u32 v18, 48, v16")
    I("v_cmp_lt_u32 vcc, v18, v17")
    I("s_waitcnt lgkmcnt(0)")
    for i in range(12): I(f"v_add_lshl_u32 v{BAS+i}, v{BAS+i}, v{RNK+i}, 3")
    I("s_mov_b64 exec, s[42:43]")
    I("ds_write_b32 v16, v21")
    for i in range(12):
        I(f"s_mov_b64 exec, {mk(i)}")
        I(f"ds_write_b64 v{BAS+i}, {vr(PAIR+2*i,2)}")
    I("s_mov_b64 exec, -1")
    I(f"s_or_b64 s[42:43], vcc, {mk(12)}")
    I(f"s_or_b32 s3, s42, s43")
    I(f"s_or_b32 s3, s3, s{S_SLOW}")
    I("s_cbranch_scc1 B_p2x")
    with warm():
        L("B_p2x")
        I("s_waitcnt lgkmcnt(0)")
        I(f"s_mov_b64 exec, {mk(12)}")
        for i in range(12, 15): I(f"ds_read_b32 v{BAS+i}, v{DAD+i} offset:{L_XST}")
        for i in range(12, 15):
            I(f"v_bfe_u32 v{PAIR+2*i}, v{rec(i)}, 12, 14")
            I(f"v_and_b32 v{PAIR+2*i+1}, 0xfff, v{rec(i)}")
            I(f"v_add_u32 v{PAIR+2*i+1}, v{PAIR+2*i+1}, v9")
        I("s_waitcnt lgkmcnt(0)")
        for i in range(12, 15): I(f"v_add_lshl_u32 v{BAS+i}, v{BAS+i}, v{RNK+i}, 3")
        for i in range(12, 15):
            I(f"s_mov_b64 exec, {mk(i)}")
            I(f"ds_write_b64 v{BAS+i}, {vr(PAIR+2*i,2)}")
        I("s_mov_b64 exec, vcc")
        L("B_grp_loop")
        I("s_waitcnt lgkmcnt(8)")
        I("ds_write_b32 v18, v21")
        I("v_add_u32 v18, 48, v18")
        I("v_cmpx_lt_u32 vcc, v18, v17")
        I("s_cbranch_execnz B_grp_loop")
        I("s_mov_b64 exec, -1")
        I(f"s_cmp_eq_u32 s{S_SLOW}, 0")
        I("s_cbranch_scc1 B_p2done")
        L("B_warm_end")
        I(f"s_cmp_lg_u32 s{S_DONE}, 0")
        I("s_cbranch_scc1 B_p2done")
        I(f"s_cmp_gt_u32 s{S_WV}, 3")
        I("s_cbranch_scc1 B_p2done")
        I(f"s_cmp_eq_u32 s{S_MT}, 0")
        I("s_cselect_b32 exec_hi, -1, 0")
        I("s_cselect_b64 s[42:43], -1, 0")
        I("s_waitcnt lgkmcnt(0)")
        for r in range(8): I(f"ds_write_b32 v54, v{72+r} offset:{NSTR*r}")
        I("s_mov_b64 exec, s[42:43]")
        I("s_waitcnt lgkmcnt(0)")
        for r in range(8, 16): I(f"ds_write_b32 v54, v{72+r} offset:{NSTR*r}")
        I("s_mov_b64 exec, -1")
        I("s_branch B_p2done")
    L("B_p2done")
    for i in range(0, 8, 2): I(f"v_mov_b64 {vr(ACC+i,2)}, 0")
    I(f"v_mov_b64 {vr(AG[1],2)}, {vr(N8,2)}")
    I(f"s_sub_u32 s{S_N}, s{S_N}, 1")
    I("s_waitcnt lgkmcnt(0)")
    zst(1, 7)
    I("s_barrier")
    stamp(6)
    zst(1, 8)
    I("s_cbranch_scc1 B_loop_done")
    if P['fp']: I("s_setprio 3")
    for s in idx_reads(0): I(s)
    I(f"ds_read_b64 {vr(AG[0],2)}, v{GR}")
    I("s_waitcnt lgkmcnt(1)")
    for d in dma_tile(0):
        for s in d: I(s)
    if P['fp']: I("s_setprio 2")
    for s in idx_reads(1): I(s)
    I("s_waitcnt lgkmcnt(0)")
    I(f"v_lshl_add_u64 {vr(AG[0],2)}, {vr(AG[0],2)}, 0, {vr(N8,2)}")
    if not P['f1']:
        for d in dma_tile(1):
            for s in d: I(s)
        I("s_setprio 0")
        for s in ea_reads(AG[0]) + idx_reads(2): I(s)
        zst(1, 9)
        I("s_waitcnt vmcnt(5)")
    else:
        for s in ea_reads(AG[0]): I(s)
        I("s_waitcnt vmcnt(0)")
    for s in op_reads(0): I(s)
    I("s_waitcnt lgkmcnt(0)")
    stamp(7)
    zst(1, 10)
    dm = dma_tile(1)
    for i, m in enumerate(z_mfmas(Z[0], order=(4,0,1,2,3))):
        if P['f1'] and i % 2 == 1: I(dm[i//2][0])
        I(m)
        if P['f1'] and i % 2 == 1: I(dm[i//2][2])
    if P['f1']:
        I("s_setprio 0")
        for s in idx_reads(2): I(s)
        if not P['la']: I("s_waitcnt lgkmcnt(0)")
        if P['la'] == 5:
            I("s_waitcnt lgkmcnt(4)")
            for s in dma_tile(0)[0]: I(s)
            I(idx_reads(3)[0])
    I(f"s_cmp_lg_u32 s{S_SLOW}, 0")
    I("s_cbranch_scc1 B_slow")
    hm = hv_mfmas()
    I(hm[0]); I(hm[1])
    I("s_nop 8")
    for i in range(32):
        if i % 3 == 0 and 2 + i//3 < 8: I(hm[2 + i//3])
        I(f"v_exp_f32 v{Z[0]+i}, v{Z[0]+i}")
    if P['zoom'] == 6:
        I("v_mov_b32 v12, 0")
        I("s_mov_b32 s86, 0")
    if not P['la']:
        for d in dma_tile(0):
            for s in d: I(s)
        for s in idx_reads(3): I(s)
    main_loop("F", False)
    with cold():
        L("B_slow")
        I("s_nop 15")
        t1_phase(Z[0], True)
        if not P['la']:
            for d in dma_tile(0):
                for s in d: I(s)
            for s in idx_reads(3): I(s)
        main_loop("S", True)
    L("B_exit1")
    I(f"v_mov_b64 {vr(AG[0],2)}, {vr(AG[1],2)}")
    L("B_exit0")
    for s in flush(AG[0]): I(s)
    L("B_loop_done")
    if P['zoom'] == 6:
        for s in ["s_memrealtime s[82:83]", "s_waitcnt lgkmcnt(0)", "s_mov_b32 m0, s86", "s_nop 0", "v_writelane_b32 v12, s82, m0",
                  "v_writelane_b32 v12, s84, 15", "s_lshl_b32 s3, s2, 3", f"s_add_u32 s3, s3, s{S_WV}", "s_lshl_b32 s3, s3, 6",
                  f"s_add_u32 s3, s3, {STAMP_OFF+0x100000}", "v_and_b32 v13, 63, v0", "v_lshl_add_u32 v13, v13, 2, s3",
                  "s_mov_b64 exec, 0xffff", "global_store_dword v13, v12, s[22:23]", "s_mov_b64 exec, -1"]: I(s)
    stamp(8)
    I("v_lshrrev_b32 v1, 3, v0")
    I("v_and_b32 v2, 7, v0")
    I("v_lshlrev_b32 v12, 6, v2")
    I(f"v_mul_u32_u24 v1, {NSTR}, v1")
    I("v_add_u32 v12, v1, v12")
    I(f"s_lshr_b32 s42, s{S_NCNT}, 4")
    I(f"s_sub_u32 s42, s42, s{S_NB0}")
    I(f"s_lshl_b32 s42, s42, 3")
    I(f"s_lshl_b32 s3, s{S_NB0}, 7")
    I("v_lshlrev_b32 v13, 4, v0")
    I("v_cmp_gt_u32 vcc, s42, v0")
    I(f"s_cmp_lg_u32 s{S_MORE}, 0")
    I("s_waitcnt lgkmcnt(0)")
    I("s_barrier")
    stamp(9)
    I("s_cbranch_scc1 B_round")
    with cold():
        L("B_round")
        I(f"s_add_u32 s{S_DONE}, s{S_DONE}, s{S_K}")
        I(f"s_mov_b32 s{S_K}, {KBIG}")
        sort_consts_a()
        I(poll)
        prefill()
        sort_consts_b()
        I("v_lshlrev_b32 v10, 2, v7")
        I("v_mov_b32 v11, 0")
        I(f"ds_write_b32 v10, v11 offset:{L_CNT}")
        I("s_waitcnt vmcnt(0)")
        rec_addr()
        I(f"v_subrev_u32 v4, s{S_DONE}, v4")
        I(f"s_mul_i32 s3, s{S_DONE}, 2731")
        I("s_lshr_b32 s3, s3, 13")
        I("s_lshl_b32 s3, s3, 4")
        I("v_add_u32 v1, s3, v1")
        rec_preset()
        rec_loads()
        masks()
        I("s_waitcnt vmcnt(0) lgkmcnt(0)")
        I("s_barrier")
        I("s_branch B_verify")
    I(f"s_cmp_gt_u32 s{S_WV}, 4")
    I("s_cbranch_scc1 B_gen")
    for i in range(4): I(f"ds_read_b128 {vr(72+4*i,4)}, v12 offset:{256+16*i}")
    for h in range(2):
        I(f"s_waitcnt lgkmcnt({2-2*h})")
        for i in range(4*h, 4*h+4): I(f"v_cvt_f32_f64 v{16+i}, {vr(72+2*i,2)}")
        for i in range(4*h, 4*h+4): I(f"v_mul_f32 v{56+i}, s{S_C}, v{16+i}")
        for i in range(4*h, 4*h+4): I(f"v_exp_f32 v{56+i}, v{56+i}")
    for i in range(8): I(f"v_add_f32 v{56+i}, 1.0, v{56+i}")
    for i in range(8): I(f"v_rcp_f32 v{56+i}, v{56+i}")
    for i in range(8): I(f"v_mul_f32 v{56+i}, v{16+i}, v{56+i}")
    for i in range(4): I(f"v_cvt_pk_bf16_f32 v{64+i}, v{56+2*i}, v{57+2*i}")
    I("s_mov_b64 exec, vcc")
    I(f"buffer_store_dwordx4 v[64:67], v13, s[{S_O}:{S_O+3}], s3 offen" + ("", " sc1", " nt")[P['o_pol']])
    I("s_branch B_fin")
    L("B_gen")
    I("s_cmp_lg_u32 s2, 0")
    I("s_cbranch_scc1 B_fin")
    I(f"v_mov_b32 v10, s{S_TAG}")
    I("s_mov_b64 exec, 1")
    I(f"buffer_store_dword v10, off, {SW}, 0 offset:{GEN_OFF} sc1")
    L("B_fin")
    if P['stamp']: I("s_waitcnt vmcnt(0)")
    stamp(10); stamp(11)
    stamp_flush()
    L("B_end")
    I("s_endpgm")
    main_out.extend(warm_out)
    main_out.extend(cold_out)

def kernel_probe():
    idx = P['probe']; op = "min" if P['pop'] else "max"
    e(".globl probe_kernel"); e(".p2align 8"); e(".type probe_kernel,@function")
    L("probe_kernel")
    for s in ["s_cmp_ge_u32 s2, 1", "s_cbranch_scc1 P_end", "s_load_dwordx2 s[8:9], s[0:1], 72", "v_mov_b32 v1, 0", "v_mov_b32 v2, -1",
              f"v_mov_b32 v3, {-1 if P['pop'] else 0}", "ds_write_b64 v1, v[2:3]", "v_lshlrev_b32 v5, 9, v0", f"v_add_u32 v5, {STAMP_OFF}, v5",
              "s_waitcnt lgkmcnt(0)", "s_barrier"]: I(s)
    for w in range(8):
        I(f"global_load_dword v7, v5, s[8:9] offset:{64*w}")
        I(f"global_load_dword v8, v5, s[8:9] offset:{64*w+4*idx}")
        I("s_waitcnt vmcnt(0)")
        I("ds_min_u32 v1, v7")
        I(f"ds_{op}_u32 v1, v8 offset:4")
        I("s_waitcnt lgkmcnt(0)")
    for s in ["s_barrier", "ds_read_b64 v[2:3], v1", "s_waitcnt lgkmcnt(0)", "v_readfirstlane_b32 s10, v2", "v_readfirstlane_b32 s11, v3", "s_nop 3",
              "s_sub_u32 s11, s11, s10", "s_min_u32 s11, s11, 10000", "s_mul_i32 s11, s11, 10", "s_add_u32 s11, s11, 10000"]: I(s)
    L("P_spin")
    for s in ["s_memrealtime s[12:13]", "s_waitcnt lgkmcnt(0)", "s_sub_u32 s12, s12, s10", "s_cmp_lt_u32 s12, s11", "s_cbranch_scc1 P_spin"]: I(s)
    L("P_end")
    I("s_endpgm")

def desc(name, vg, sg):
    e(f".amdhsa_kernel {name}")
    e(f"  .amdhsa_next_free_vgpr {vg}")
    e(f"  .amdhsa_next_free_sgpr {sg}")
    e(f"  .amdhsa_accum_offset {(vg+3)//4*4}")
    e("  .amdhsa_group_segment_fixed_size 0")
    e("  .amdhsa_kernarg_size 80")
    e("  .amdhsa_user_sgpr_count 2")
    e("  .amdhsa_user_sgpr_kernarg_segment_ptr 1")
    e("  .amdhsa_system_sgpr_workgroup_id_x 1")
    e(".end_amdhsa_kernel")

def main():
    ap = argparse.ArgumentParser()
    ap.add_argument("-o", default="standalone__edge_featured_mpnn_egc__graph.s")
    ap.add_argument("-D", action="append", default=[])
    a = ap.parse_args()
    for d in a.D:
        k, v = d.split("=")
        assert k in P, k
        P[k] = int(v)
    e("; Edge-gated MPNN layer, one persistent kernel: bin edges by destination, exchange through ws, aggregate.")
    if P['aslist']: e(f"; @launch kernel={KNAME} grid=({NW},1,1) block=(512,1,1) lds={LDS_B}")
    else:           e(f"; @launch grid=({NW},1,1) block=(512,1,1) lds={LDS_B}")
    if P['probe'] >= 0: e("; @launch kernel=probe_kernel grid=(1,1,1) block=(256,1,1) lds=64")
    e('.amdgcn_target "amdgcn-amd-amdhsa--gfx950"')
    e(".text")
    kernel()
    if P['probe'] >= 0: kernel_probe()
    e('.section .rodata,"a"')
    e(".p2align 6")
    desc(KNAME, 256, 102)
    if P['probe'] >= 0:
        e(".p2align 6")
        desc("probe_kernel", 16, 32)
    open(a.o, "w").write("\n".join(main_out) + "\n")
main()
```

```python
import sys, argparse

P = dict(
    a_nt=0, prio=2, epf=4, xq1=0, xq2=0, xq3=0, xq4=0, xq0=0, defer=0, la=2, f1=1, fp=1, tlb=0, warm=0, epx=0, wsc=0, msc=0, zsp=0, ofirst=1, zp=0, xud=1, deep=0, osh=4, yp=2, pf=0, bgp=0, ep=1, mo=0, m0t=1, mw=1, sp=1, t1o=0, wlate=0, bgv=0, tch=0, tail=1, xp=0, epo=0, eab=0, zy=0, ydel=0, odel=0, epos=0, pre=0, ppos=0, psl=0, o_pol=1, cpf=1, forceslow=0, w1=1, rsl=0, rplain=1, wbl=0, abar=0,
    aslist=1, stamp=0, zoom=0, probe=-1, pop=0, abl=0, bench_n=0,
)
KNAME = "standalone__edge_featured_mpnn_egc__graph_kernel"
NW = 256; CH = 2500; BN = 40
GEN_OFF = 0
REC_OFF = 256; RSTR = 127*128; OSTR = 2176
OFF_OFF = REC_OFF + NW*RSTR
WS_USED = OFF_OFF + NW*OSTR

NSTR   = 768
L_CNT  = BN*NSTR
L_RING = L_CNT + 256
L_XST  = L_RING + 24576
L_WST  = L_RING + 40960
L_GT   = L_WST + 40960
GTN    = 800
L_FLG  = L_GT + GTN*8
L_MKG  = L_FLG + 64
L_LIST = L_MKG + 64
NCAP   = 128
LCAP   = 4992
KSMALL = 18
KBIG   = 30
LDS_B  = L_LIST + BN*NCAP*8
L_HIST = L_RING
L_START= L_RING + 2048
L_STAGE= L_RING + 3072
assert NW*KSMALL + BN*7 <= LCAP - 32 and LCAP <= BN*NCAP and BN*NCAP//8 + 4*(8*4+5) + 4 <= GTN
assert L_MKG % 64 == 0 and LDS_B <= 163840 and L_RING % 256 == 0 and L_XST % 256 == 0 and L_WST % 128 == 0
assert L_XST + 512 < 65536 and L_STAGE + 16384 <= L_XST and (CH + 2*256)//3*16 <= 126*128
MARK   = 0x7fffffff

main_out = []; cold_out = []; warm_out = []
CUR = [main_out]
INLOOP = [False]
def e(s=""): CUR[0].append(s)
def I(s):
    if s is None: return
    if INLOOP[0]:
        a = P['abl']
        if a & 1 and s.startswith("buffer_load") and f"s[{S_X}:" in s: s = "s_nop 0"
        if a & 2 and s.startswith("buffer_load") and f"s[{S_E}:" in s: s = "s_nop 0"
        if a & 8 and s.startswith("v_mfma"): s = "s_nop 0"
        if a & 16 and s.startswith("v_pk"): s = "s_nop 0"
        if a & 32 and (s.startswith("v_exp") or s.startswith("v_rcp")): s = "s_nop 0"
        if a & 4 and (s.startswith("ds_add") or s.startswith("v_cvt_f64")): s = "s_nop 0"
        if a & 64 and s.startswith("ds_read_b128"): s = "s_nop 0"
        if a & 128 and (s.startswith("ds_read2") or s.startswith("ds_read_b32")): s = "s_nop 0"
        if a & 256 and s.startswith("v_mfma") and f"v[{HV}:" in s.split(",")[0] + ",": s = "s_nop 1"
        if a & 256 and s.startswith("v_mfma") and f"v[{HV+16}:" in s.split(",")[0]: s = "s_nop 1"
        if a & 512 and s.startswith("v_exp"): s = "s_nop 1"
        if a & 1024 and s.startswith("v_rcp"): s = "s_nop 1"
    CUR[0].append("    " + s)
def L(s): CUR[0].append(s + ":")
class cold:
    def __enter__(self): CUR[0] = cold_out
    def __exit__(self, *a): CUR[0] = main_out
class warm:
    def __enter__(self): CUR[0] = warm_out
    def __exit__(self, *a): CUR[0] = main_out
def vr(a, n): return f"v[{a}:{a+n-1}]"

STAMP_OFF = 0x1000000
def zst(z, i):
    if P['zoom'] == z: stamp(i, True)
def stamp(i, force=False):
    if P['zoom'] == 6 and i in (6, 7):
        I("s_memrealtime s[82:83]"); I("s_memtime s[88:89]"); I("s_waitcnt lgkmcnt(0)")
        I(f"s_mov_b32 s{90+2*(i-6)}, s82"); I(f"s_mov_b32 s{91+2*(i-6)}, s88")
        return
    if P['zoom'] and not force and 2 <= i <= 10: return
    if P['stamp'] == 2 and not P['zoom']:
        if i in (9, 10): return
        if i in (7, 8):
            I("s_memtime s[82:83]"); I("s_waitcnt lgkmcnt(0)"); I(f"s_mov_b32 s{84+i+2}, s82")
    if P['stamp']:
        I("s_memrealtime s[82:83]") if (i in (0, 11) or P['stamp'] == 2) else I("s_memtime s[82:83]")
        I("s_waitcnt lgkmcnt(0)")
        I(f"s_mov_b32 s{84+i}, s82")
def stamp_flush():
    if P['stamp']:
        I("s_mov_b64 exec, 1")
        I(f"s_lshl_b32 s3, s2, 3")
        I(f"s_add_u32 s3, s3, s{S_WV}")
        I("s_lshl_b32 s3, s3, 6")
        I(f"s_add_u32 s3, s3, {STAMP_OFF}")
        I("v_mov_b32 v1, s3")
        for i in range(12):
            I(f"v_mov_b32 v2, s{84+i}")
            I(f"global_store_dword v1, v2, s[22:23] offset:{4*i}")

def dpp_scan(v, fill=()):
    fill = list(fill)
    def gap():
        n = 0
        while n < 2 and fill:
            I(fill.pop(0)); n += 1
        if n == 0: I("s_nop 1")
        elif n == 1: I("s_nop 0")
    for sh in (1,2,4,8):
        gap()
        I(f"v_add_u32_dpp v{v}, v{v}, v{v} row_shr:{sh} row_mask:0xf bank_mask:0xf bound_ctrl:0")
    gap()
    I(f"v_add_u32_dpp v{v}, v{v}, v{v} row_bcast:15 row_mask:0xa bank_mask:0xf")
    gap()
    I(f"v_add_u32_dpp v{v}, v{v}, v{v} row_bcast:31 row_mask:0xc bank_mask:0xf")
    for f in fill: I(f)

EA = 4; N8 = 14; ACC = 16; GRAW = 28; AG = [30, 32]; GR = 34; GQ = 35; LX = 24; LE = 25; LC = 26; LB = 72; ER = 37
XR = 38; IDX = 42; EOP = 52; XB = 56; HV = 88; Z = [120, 152]; WZ = 184; WV = 224
REC = 120; DAD = 140; RNK = 156; BAS = 56; PAIR = 88
def rec(i): return REC + 4*(i//3) + i % 3
S_X, S_E, S_O, S_W = 24, 28, 32, 36
S_WV, S_RING, S_C, S_TAG, S_ONE, S_BIN, S_DONE, S_K, S_N, S_TOT, S_MORE = 40, 41, 96, 97, 98, 100, 101, 20, 21, 4, 5
S_NB0, S_NCNT, S_MK = 80, 81, 48
S_MT, S_SLOW, S_TMO, S_ROT, S_FC, S_INC = 8, 9, 10, 11, 78, 12
SW = f"s[{S_W}:{S_W+3}]"; SX = f"s[{S_X}:{S_X+3}]"; SE = f"s[{S_E}:{S_E+3}]"
SX2 = SX
def mk(i): return f"s[{S_MK+2*i}:{S_MK+2*i+1}]"
def wz(s, n): return vr(WZ + (2*s+n)*4, 4)
def wv(s, n): return vr(WV + (2*s+n)*4, 4)

def sort_consts_a():
    I("v_and_b32 v7, 63, v0")
    I("v_lshrrev_b32 v8, 1, v0")
    I(f"s_lshl_b32 s3, s{S_BIN}, 3")
    I(f"s_add_u32 s3, s3, {OFF_OFF}")
    I(f"v_mul_u32_u24 v3, {OSTR}, v8")
    I("v_add_u32 v3, s3, v3")
    I("v_and_b32 v6, 1, v0")
    I(f"v_mul_u32_u24 v9, {CH}, v8")
    I(f"v_mul_u32_u24 v2, {RSTR}, v8")
    I("v_lshl_add_u32 v2, v6, 4, v2")
    I("v_mul_u32_u24 v6, 3, v6")
def sort_consts_b():
    I("v_mul_u32_u24 v10, 43, v7")
    I("v_lshrrev_b32 v10, 9, v10")
    I("v_mul_u32_u24 v11, 12, v10")
    I("v_sub_u32 v11, v7, v11")
    I(f"s_mul_i32 s3, s{S_WV}, 5")
    I("v_add_u32 v10, s3, v10")
    I("v_cmp_gt_u32 vcc, 60, v7")
    I(f"v_lshlrev_b32 v22, 3, v11")
    I(f"v_add_u32 v22, {L_GT}, v22")
    I("v_cndmask_b32 v10, 50, v10, vcc")
    I("v_lshlrev_b32 v20, 2, v10")
    I(f"v_add_u32 v20, {L_XST}, v20")
    I(f"v_mul_u32_u24 v173, {NSTR}, v10")
    I("v_lshlrev_b32 v21, 6, v11")
    I("v_lshl_add_u32 v172, v10, 10, v21")
    I(f"v_add_u32 v172, {L_LIST}, v172")
    I(f"s_lshl_b32 s42, s{S_WV}, 5")
    if P['ofirst']:
        I(f"s_cmp_lt_u32 s{S_WV}, 4")
        I(f"s_cselect_b32 s3, {L_GT-128}, {L_GT+128}") if False else None
        I(f"s_mov_b32 s3, {L_GT-128}")
        I(f"s_cselect_b32 s3, s3, {L_GT+128}")
        I("s_add_u32 s42, s42, s3")
    else:
        I(f"s_add_u32 s42, s42, {L_GT}")
    I("v_lshrrev_b32 v10, 5, v7")
    I(f"v_lshl_add_u32 v{GR}, v10, 4, s42")
    I("v_lshrrev_b32 v10, 4, v7")
    I(f"v_lshl_add_u32 v{GQ}, v10, 3, s42")

def prefill_list():
    for i in range(4): I(f"v_mov_b32 v{16+i}, {MARK}")
    I(f"v_mov_b32 v10, {L_MKG}")
    I("v_lshl_add_u32 v10, v0, 4, v10")
    for i in range(5): I(f"ds_write_b128 v10, v[16:19] offset:{8192*i}")
    I("s_mov_b64 exec, 15")
    I(f"ds_write_b128 v10, v[16:19] offset:{8192*5}")
    I("s_mov_b64 exec, -1")
def prefill():
    prefill_list()
    I(f"v_cmp_gt_u32 vcc, {GTN//2}, v0")
    I(f"v_mov_b32 v16, {L_MKG}")
    I("v_mov_b32 v17, 0")
    I(f"v_mov_b32 v11, {L_GT}")
    I("v_cndmask_b32 v16, 0, v16, vcc")
    I(f"v_cmp_ge_u32 vcc, {GTN//2}, v0")
    I("v_lshl_add_u32 v11, v0, 4, v11")
    I("v_mov_b64 v[18:19], v[16:17]")
    I("s_mov_b64 exec, vcc")
    I("ds_write_b128 v11, v[16:19]")
    I("s_mov_b64 exec, -1")

def masks():
    I(f"v_min_i32 v5, s{S_K}, v4")
    I("v_sub_u32 v5, v5, v6")
    I(f"v_cmp_lt_i32 s[46:47], s{S_K}, v4")
    for i in range(15):
        I(f"v_cmp_lt_i32 {mk(i)}, {6*(i//3) + i % 3}, v5")

def rec_addr():
    I("v_lshrrev_b32 v4, 16, v12")
    I("v_and_b32 v1, 0xffff, v12")
    I("v_lshl_add_u32 v1, v1, 2, v2")
def rec_preset():
    for k in range(5): I(f"v_mov_b32 v{REC+4*k+3}, s{S_TAG}")
def rec_loads(pol=" sc1"):
    I("v_sub_u32 v5, v4, v6")
    for k in range(5):
        I(f"v_cmpx_lt_i32 vcc, {6*k}, v5")
        I(f"buffer_load_dwordx4 {vr(REC+4*k,4)}, v1, {SW}, 0 offen offset:{REC_OFF+32*k}{pol}")
    I("s_mov_b64 exec, -1")

def dad(i):
    return f"v_and_b32_sdwa v{DAD+i}, s{S_FC}, v{rec(i)} dst_sel:DWORD dst_unused:UNUSED_PAD src0_sel:DWORD src1_sel:BYTE_3"

def dma_tile(o=0):
    pol = lambda b: (" sc0" if b & 4 else "") + (" nt" if b & 1 else "") + (" sc1" if b & 2 else "")
    r = [[f"s_add_u32 m0, s{S_RING}, {o+4096}", "s_nop 0",
          f"buffer_load_dwordx4 {vr(IDX+8,2)}, {SE}, 0 idxen offen{pol(P['epo'])} lds"]]
    for i in range(4):
        if P['m0t']:
            r.append([f"s_add_u32 m0, s{S_RING}, {o}" if i == 0 else None, "s_nop 0" if i == 0 else None,
                      f"buffer_load_dwordx4 {vr(IDX+2*i,2)}, {SX2}, 0 idxen offen offset:{1024*i}{pol(P['xp'])} lds"])
        else:
            r.append([f"s_add_u32 m0, s{S_RING}, {o+i*1024}", "s_nop 0",
                      f"buffer_load_dwordx4 {vr(IDX+2*i,2)}, {SX}, 0 idxen offen lds"])
    return r
def base_read(dst, k): return f"ds_read2_b32 {vr(dst,2)}, v{GQ} offset0:{int(64*k)} offset1:{int(64*k)}"
def base_add(src): return f"v_lshl_add_u64 {vr(LX,2)}, {vr(src,2)}, 0, {vr(LC,2)}"
def grp_read(dst, k): return f"ds_read2_b32 {vr(dst,2)}, v{GR} offset0:{int(64*k)+1} offset1:{int(64*k)+3}"
def idx_reads():
    return [f"ds_read_b32 v{IDX+8}, v{LE}"] + [f"ds_read_b32 v{IDX+2*i}, v{LX} offset:{16*i}" for i in range(4)]
def op_reads(o=0):
    return [f"ds_read_b128 {vr(XB+4*s,4)}, v{XR+s} offset:{o}" for s in range(4)] + [f"ds_read_b128 {vr(EOP,4)}, v{ER} offset:{o}"]
def ea_reads(ag):
    return [f"ds_read2_b32 {vr(EA+2*(2*g+n),2)}, v{ag+g} offset0:{n} offset1:{n}" for g in range(2) for n in range(2)]
def flush(ag):
    return [f"ds_add_f64 v{ag+g}, {vr(ACC+2*(2*n+g),2)} offset:{256+256*n}" for n in range(2) for g in range(2)]
def z_mfmas(zb, order=(0,1,2,3,4)):
    r = []
    for s in order:
        for n in range(2):
            d = vr(zb+16*n,16)
            a = vr(XB+4*s,4) if s < 4 else vr(EOP,4)
            r.append(f"v_mfma_f32_32x32x16_bf16 {d}, {a}, {wz(s,n)}, {'0' if s == order[0] else d}")
    return r[0::2] + r[1::2] if P['mo'] else r
def hv_mfmas():
    r = []
    for s in range(4):
        for n in range(2):
            d = vr(HV+16*n,16)
            r.append(f"v_mfma_f32_32x32x16_bf16 {d}, {vr(XB+4*s,4)}, {wv(s,n)}, {'0' if s==0 else d}")
    return r[0::2] + r[1::2] if P['mo'] else r
def pairs():
    for n in range(2):
        for g in range(2):
            for j in range(4):
                yield 16*n + 8*g + 2*j, EA + 2*(2*g+n)

def t1_phase(zc, slow):
    if slow:
        I("s_waitcnt lgkmcnt(0)")
        for r, f in pairs(): I(f"v_pk_add_f32 {vr(zc+r,2)}, {vr(zc+r,2)}, {vr(f,2)}")
    e("    ; exp2 of the gate pre-activation, x[src]@v_w on the matrix pipe")
    ms = hv_mfmas()
    if P['prio'] and P['sp'] == 0: I("s_setprio 1")
    for i in range(32):
        k = i - P['t1o']
        if k >= 0 and k % 3 == 0 and k//3 < 8: I(ms[k//3])
        if i == 0 and P['sp'] == 1: I("s_setprio 1")
        I(f"v_exp_f32 v{zc+i}, v{zc+i}")

def rest_phase(u, slow, deep=False):
    zc, zn = Z[u], Z[1-u]
    so = 40960*u if deep else 0
    trim = P['tail'] and not slow
    if trim:
        I(f"s_sub_u32 s{S_N}, s{S_N}, 1")
        I(f"s_cbranch_scc1 B_tail{u}")
    if P['prio']: I("s_setprio 0")
    if P['zoom'] == 6:
        I("s_memrealtime s[82:83]")
        I("s_memtime s[88:89]")
    e("    ; operands of the next tile, sums of the previous tile, table reads")
    I(f"s_waitcnt vmcnt({5 if deep else 0}) lgkmcnt(0)")
    for o in op_reads(so) + flush(AG[1-u]) + [grp_read(GRAW, 1+u), base_read(LB, u)]: I(o)
    if P['zoom'] == 6:
        I("s_mov_b32 m0, s86")
        I("s_add_u32 s86, s86, 1")
        I("s_movreld_b32 s48, s82")
        I("s_movreld_b32 s62, s88")
    e(".p2align 3")
    if P['sp'] == 2: I("s_setprio 1"); I("s_nop 0")
    for r, f in pairs():
        if slow: I(f"v_pk_add_f32 {vr(zc+r,2)}, {vr(zc+r,2)}, s[{S_ONE}:{S_ONE+1}]")
        else:    I(f"v_pk_fma_f32 {vr(zc+r,2)}, {vr(zc+r,2)}, {vr(f,2)}, s[{S_ONE}:{S_ONE+1}]")
    e("    ; 1/d, gate pre-activation of the next tile on the matrix pipe")
    ms = z_mfmas(zn)
    I(f"s_waitcnt lgkmcnt({0 if P['mw'] else 6})")
    if P['prio'] and P['sp'] == 0: I("s_setprio 1")
    for i in range(32):
        if i % 3 == 0 and i//3 < 10:
            I(ms[i//3])
            if i == 0 and P['sp'] == 1: I("s_setprio 1")
            if i//3 == 9 and not P['mw']: I("s_waitcnt lgkmcnt(0)")
        I(f"v_rcp_f32 v{zc+i}, v{zc+i}")
        if i == 29: I(f"v_lshl_add_u64 {vr(AG[1-u],2)}, {vr(GRAW,2)}, 0, {vr(N8,2)}")
        if i == 30: I(base_add(LB))
    if P['prio']: I("s_setprio 0")
    other = ea_reads(AG[1-u]) + idx_reads()
    for d in dma_tile(so):
        I(d[0]); I(other.pop(0)); I(d[2])
    for o in other: I(o)
    if not trim: I(f"s_sub_u32 s{S_N}, s{S_N}, 1")
    if P['sp'] == 2: I("s_setprio 1")
    acc_phase(u)

def acc_phase(u, last=False):
    zc = Z[u]
    e(".p2align 3")
    for j in range(4):
        for n in range(2):
            for g in range(2):
                r = 16*n + 8*g + 2*j
                a = ACC + 2*(2*n+g)
                if j == 0: I(f"v_pk_mul_f32 {vr(a,2)}, {vr(zc+r,2)}, {vr(HV+r,2)}")
                else:      I(f"v_pk_fma_f32 {vr(a,2)}, {vr(zc+r,2)}, {vr(HV+r,2)}, {vr(a,2)}")
    for a in range(ACC, ACC+8, 2): I(f"v_add_f32 v{a}, v{a}, v{a+1}")
    if u == 1 and not P['bench_n'] and not last:
        I(f"v_lshl_add_u64 {vr(GR,2)}, {vr(GR,2)}, 0, s[{S_INC}:{S_INC+1}]")
    for a in range(ACC, ACC+8, 2): I(f"v_cvt_f64_f32 {vr(a,2)}, v{a}")

def main_loop(tag, slow, deep=False):
    INLOOP[0] = True
    L(f"{tag}_loop")
    rest_phase(0, slow, deep)
    if slow or not P['tail']: I("s_cbranch_scc1 B_exit0")
    t1_phase(Z[1], slow)
    rest_phase(1, slow, deep)
    if slow or not P['tail']: I("s_cbranch_scc1 B_exit1")
    t1_phase(Z[0], slow)
    I(f"s_branch {tag}_loop")
    INLOOP[0] = False

def tr_quad(dst, areg, row0):
    return [f"ds_read_b64_tr_b16 {vr(dst+2*jj,2)}, v{areg} offset:{(row0+4*jj)*128}" for jj in range(2)]

S_SC = 79
def scale_weights(nts, A=104, D=(140, 156), T=100):
    I(f"v_bfe_u32 v{T}, v0, 2, 1")
    I(f"v_bfe_u32 v{T+1}, v0, 5, 1")
    I(f"v_xor_b32 v{T}, v{T}, v{T+1}")
    I(f"v_bfe_u32 v{T+1}, v0, 3, 2")
    I(f"v_lshl_or_b32 v{T}, v{T}, 2, v{T+1}")
    I(f"v_bfe_u32 v{T+1}, v0, 1, 1")
    I(f"v_lshl_or_b32 v{T}, v{T}, 1, v{T+1}")
    I(f"v_and_b32 v{T+1}, 1, v0")
    I(f"v_lshlrev_b32 v{T+1}, 4, v{T+1}")
    I(f"v_mov_b32 v{T+2}, 0xbfb9")
    I(f"v_mov_b32 v{T+3}, 0x3b2c")
    I(f"v_lshlrev_b32 v{T+2}, v{T+1}, v{T+2}")
    I(f"v_lshlrev_b32 v{T+3}, v{T+1}, v{T+3}")
    mks = ["vcc", "s[14:15]", "s[16:17]", "s[42:43]"]
    for h in range(2):
        for i in range(4): I(f"v_cmp_eq_u32 {mks[i]}, {4*h+i}, v{T}")
        for i in range(4):
            I(f"v_cndmask_b32 v{A+4*h+i}, 0, v{T+2}, {mks[i]}")
            I(f"v_cndmask_b32 v{A+8+4*h+i}, 0, v{T+3}, {mks[i]}")
    chains = [(n, ss) for n in nts for ss in ((0, 1), (2, 3), (4,))]
    pend = None
    def cvt(c):
        n, ss, d = c
        for k, st in enumerate(ss):
            for j in range(4): I(f"v_cvt_pk_bf16_f32 v{WZ+(2*st+n)*4+j}, v{d+8*k+2*j}, v{d+8*k+2*j+1}")
    I("s_nop 1")
    for ci, (n, ss) in enumerate(chains):
        d = D[ci % 2]; first = True
        for k, st in enumerate(ss):
            for part in range(2):
                I(f"v_mfma_f32_32x32x16_bf16 {vr(d,16)}, {vr(A+8*part+4*k,4)}, {wz(st,n)}, {'0' if first else vr(d,16)}")
                first = False
        if pend:
            I("s_nop 9")
            cvt(pend)
        pend = (n, ss, d)
    I("s_nop 11")
    cvt(pend)
    I("s_nop 1")

def kernel():
    nt = " nt" if P['a_nt'] else ""
    DST, SRC, BAD, RK, TMP, WB = 120, 128, 136, 144, 152, 160
    TR0, TR1 = 70, 71
    e(f".globl {KNAME}")
    e(".p2align 8")
    e(f".type {KNAME},@function")
    L(KNAME)
    I(f"s_cmp_ge_u32 s2, {NW}")
    I("s_cbranch_scc1 B_end")
    stamp(0); stamp(1)
    e("    ; ---- start-up: kernel arguments, code prefetch, dst/src of this workgroup's 2500 edges")
    I("s_load_dwordx16 s[4:19], s[0:1], 0")
    I("s_load_dwordx2 s[22:23], s[0:1], 72")
    I("v_lshrrev_b32 v1, 6, v0")
    if P['cpf']:
        I("s_getpc_b64 s[46:47]")
        L("B_pc")
        I("v_mul_u32_u24 v55, 50, v1")
        I("v_sub_u32 v55, v0, v55")
        I("v_lshlrev_b32 v55, 7, v55")
        I("v_min_u32 v55, B_warm_end-B_pc, v55")
        I("s_mov_b64 exec, 0x3fff")
        I("global_load_dword v55, v55, s[46:47]")
        I("s_mov_b64 exec, -1")
    I(f"s_mul_i32 s3, s2, {CH*4}")
    I(f"v_readfirstlane_b32 s{S_WV}, v1")
    I("v_lshlrev_b32 v23, 4, v0")
    I("v_add_u32 v24, s3, v23")
    I("s_add_u32 s3, s3, 8192")
    I("v_lshl_add_u32 v25, v0, 2, s3")
    I(f"s_movk_i32 s3, {CH-2048}")
    I("v_cmp_gt_u32 s[44:45], s3, v0")
    I("v_and_b32 v7, 63, v0")
    I("v_mov_b32 v16, 0")
    I("v_lshlrev_b32 v10, 2, v0")
    I("v_lshlrev_b32 v5, 2, v7")
    I(f"ds_write_b32 v10, v16 offset:{L_HIST}")
    I(f"ds_write_b32 v5, v16 offset:{L_CNT}")
    I(f"s_and_b32 s{S_BIN}, s2, 7")
    I(f"s_lshl_b32 s{S_BIN}, s{S_BIN}, 5")
    I("s_lshr_b32 s3, s2, 3")
    I(f"s_add_u32 s{S_BIN}, s{S_BIN}, s3")
    I(f"s_mul_i32 s{S_NB0}, s{S_BIN}, 625")
    I(f"s_add_u32 s{S_NCNT}, s{S_NB0}, 640")
    I(f"s_add_u32 s{S_NB0}, s{S_NB0}, 15")
    I(f"s_lshr_b32 s{S_NB0}, s{S_NB0}, 4")
    I("v_and_b32 v13, 7, v7")
    I("v_and_b32 v12, 16, v0")
    I("v_lshlrev_b32 v12, 2, v12")
    I("v_xor_b32 v28, v23, v12")
    I(f"v_and_b32 v{IDX+1}, 0x7f, v28")
    I(f"s_lshl_b32 s3, s{S_WV}, 8")
    I("s_add_u32 s3, s3, 16384")
    I("v_lshl_add_u32 v29, v7, 4, s3")
    I("v_add_u32 v54, 8192, v23")
    I(f"s_mov_b32 s{S_X+2}, 10000")
    I(f"s_mov_b32 s{S_X+3}, 0x20000")
    I(f"s_mov_b32 s{S_W+2}, {WS_USED}")
    I(f"s_mov_b32 s{S_W+3}, 0x20000")
    def opaddr():
        I(f"s_mul_i32 s{S_RING}, s{S_WV}, 5120")
        I(f"s_add_u32 s{S_RING}, s{S_RING}, {L_RING}")
        I("v_bfe_u32 v10, v7, 2, 1")
        I("v_and_b32 v13, 3, v7")
        I("v_lshl_add_u32 v10, v10, 4, v13")
        I("v_bfe_u32 v11, v7, 3, 2")
        I("v_lshl_add_u32 v10, v11, 2, v10")
        I("v_lshrrev_b32 v11, 5, v7")
        I("v_bfe_u32 v12, v10, 1, 3")
        I("v_xor_b32 v12, v12, v11")
        I("v_bfe_u32 v1, v10, 1, 2")
        I(f"v_lshl_add_u32 v1, v1, 10, s{S_RING}")
        I("v_lshrrev_b32 v8, 3, v10")
        I("v_lshl_add_u32 v1, v8, 8, v1")
        I("v_and_b32 v8, 1, v10")
        I("v_lshl_add_u32 v1, v8, 7, v1")
        for s in range(4):
            I(f"v_xor_b32 v{XR+s}, {2*s}, v12")
            I(f"v_lshl_add_u32 v{XR+s}, v{XR+s}, 4, v1")
        I("v_bfe_u32 v12, v10, 3, 1")
        I("v_xor_b32 v12, v12, v11")
        I("v_lshlrev_b32 v12, 4, v12")
        I("v_lshl_add_u32 v12, v10, 5, v12")
        I(f"s_add_u32 s42, s{S_RING}, 4096")
        I(f"v_add_u32 v{ER}, s42, v12")
        I("v_bfe_u32 v12, v7, 2, 2")
        I("v_lshl_add_u32 v12, v11, 3, v12")
        I("v_lshlrev_b32 v12, 7, v12")
        I("v_lshl_add_u32 v12, v13, 3, v12")
        I("v_bfe_u32 v13, v7, 4, 1")
        I("v_lshl_add_u32 v12, v13, 5, v12")
        I("v_bfe_u32 v13, v7, 3, 1")
        I("v_lshl_add_u32 v12, v13, 6, v12")
        I(f"v_add_u32 v{TR0}, {L_WST}, v12")
        I(f"v_xor_b32 v{TR1}, 64, v{TR0}")
    if P['pre']:
        opaddr()
        I("v_and_b32 v13, 7, v7")
    if P['pre'] == 2: prefill()
    zst(3, 2)
    I("s_waitcnt lgkmcnt(0)")
    zst(3, 3)
    I(f"global_load_dwordx4 {vr(DST,4)}, v24, s[10:11]{nt}")
    I("s_mov_b64 exec, s[44:45]")
    I(f"global_load_dword v{DST+4}, v25, s[10:11]{nt}")
    I("s_mov_b64 exec, -1")
    I(f"s_load_dword s{S_TAG}, s[22:23], {GEN_OFF}")
    if P['abar'] == 0: I("s_barrier")
    I(f"global_load_dwordx4 {vr(SRC,4)}, v24, s[8:9]{nt}")
    I("s_mov_b64 exec, s[44:45]")
    I(f"global_load_dword v{SRC+4}, v25, s[8:9]{nt}")
    I("s_mov_b64 exec, -1")
    if P['abar'] == 1: I("s_barrier")
    def wb_loads(areg):
        I(f"global_load_dwordx4 {vr(WB,4)}, v{areg}, s[16:17]")
        I("s_mov_b64 exec, 0xffff")
        I(f"global_load_dwordx4 {vr(WB+4,4)}, v29, s[16:17]")
        I("s_mov_b64 exec, -1")
    n1 = 0
    if not P['wbl']:
        wb_loads(54); n1 = 2
    else:
        I("v_mov_b32 v67, v54")
    I(f"s_mov_b32 s{S_X}, s4")
    I(f"s_and_b32 s{S_X+1}, s5, 0xffff")
    I(f"s_or_b32 s{S_X+1}, s{S_X+1}, {128<<16}")
    if P['tlb']:
        I("v_lshlrev_b32 v36, 3, v7")
        I(f"v_add_lshl_u32 v36, v36, s{S_WV}, 19")
        I("v_min_u32 v36, 20479996, v36")
        I("s_mov_b64 exec, 31")
        I("global_load_dword v53, v36, s[6:7]")
        I("s_mov_b64 exec, -1")
        n1 += 1
    I(f"s_mov_b32 s{S_W}, s22")
    I(f"s_and_b32 s{S_W+1}, s23, 0xffff")
    if P['tch']:
        I(f"v_mul_u32_u24 v36, {32*RSTR}, v7")
        I(f"v_add_u32 v36, {REC_OFF + 126*128}, v36")
        I(f"v_min_u32 v36, {OFF_OFF + 255*OSTR + 2048}, v36")
        I("v_mov_b32 v37, 0")
        I("s_mov_b64 exec, 0x411")
        I(f"buffer_load_dword v53, v36, {SW}, 0 offen")
        I("s_mov_b64 exec, 1")
        n1 += 1
        if P['tch'] > 1:
            for base in (12, 14, 4, 18):
                I(f"global_load_dword v53, v37, s[{base}:{base+1}]")
            n1 += 4
        I("s_mov_b64 exec, -1")
    I(f"s_and_b32 s42, s{S_WV}, 1")
    I("s_lshl_b32 s42, s42, 6")
    I("v_xor_b32 v30, s42, v29")
    I(f"s_and_b32 s42, s{S_WV}, 3")
    I(f"s_lshr_b32 s3, s{S_WV}, 2")
    I("s_lshl_b32 s3, s3, 4")
    I("s_add_u32 s3, s3, s42")
    I("s_lshl_b32 s3, s3, 1")
    I("v_lshrrev_b32 v12, 4, v7")
    I("v_lshl_add_u32 v32, v12, 3, s3")
    I("v_bfe_u32 v12, v7, 3, 1")
    I("v_add_u32 v32, v32, v12")
    I(f"v_cmp_gt_u32 vcc, {BN}, v32")
    I(f"v_add_u32 v32, s{S_NB0}, v32")
    I("s_lshl_b32 s42, s42, 4")
    I(f"v_xor_b32 v33, s42, v{IDX+1}")
    I("v_cndmask_b32 v32, -1, v32, vcc")
    I("v_lshrrev_b32 v12, 3, v7")
    I("s_and_b32 s3, s2, -8")
    I(f"s_add_u32 s3, s3, s{S_WV}")
    I("s_mul_i32 s3, s3, 40")
    I("v_add_u32 v52, s3, v7")
    I(f"s_lshl_b32 s43, s{S_WV}, 10")
    I(f"v_lshl_add_u32 v15, v12, 3, s{S_WV}")
    I("v_add_u32 v15, 64, v15")
    I("v_lshlrev_b32 v31, 4, v13")
    I("v_lshl_add_u32 v31, v15, 7, v31")
    I(f"s_lshl_b32 s3, s{S_WV}, 7")
    I("v_lshl_add_u32 v14, v7, 3, s3")
    if not P['pre']: opaddr()
    I(f"s_bfe_u32 s{S_MT}, s{S_WV}, 0x10001")
    I(f"s_lshl_b32 s3, s{S_MT}, 12")
    I(f"s_sub_u32 s3, s3, s{S_RING}")
    I(f"s_add_u32 s3, s3, {L_XST}")
    for s in range(4): I(f"v_add_u32 v{56+s}, s3, v{XR+s}")
    I(f"s_lshr_b32 s20, s{S_WV}, 2")
    I(f"s_and_b32 s21, s{S_WV}, 1")
    I("s_mul_i32 s3, s20, 26624")
    I("s_lshl_b32 s42, s21, 6")
    I(f"v_xor_b32 v67, s42, v{TR0}")
    I("v_add_u32 v67, s3, v67")
    I("v_lshrrev_b32 v11, 5, v7")
    I(f"v_mul_u32_u24 v54, {16*NSTR}, v11")
    if P['pre'] != 2 and P['pf'] == 0: prefill()
    for j in range(4): I(f"v_lshl_or_b32 v{62+j}, v0, 2, {j}")
    I("v_mov_b32 v11, 10923")
    I("v_add_u32 v66, 2048, v0")
    I("v_lshlrev_b32 v1, 4, v7")
    def xq(name):
        n = P[name]
        if not n: return 0
        I(f"s_mov_b32 exec_lo, {hex(((1<<n)-1) & 0xffffffff)}")
        I(f"s_mov_b32 exec_hi, {hex(((1<<n)-1) >> 32)}")
        I(f"buffer_load_dword v53, v52, {SX}, 0 idxen")
        I("s_mov_b64 exec, -1")
        I(f"v_add_u32 v52, {n}, v52")
        return 1
    def bg_b():
        if P['bgv']:
            I(f"buffer_load_dwordx4 v[88:91], v[32:33], {SX}, 0 idxen offen")
            for i, base in enumerate((16, 12, 14)):
                I(f"global_load_dwordx4 {vr(92+4*i,4)}, v28, s[{base}:{base+1}]")
            return
        I(f"s_add_u32 m0, s43, {L_XST}")
        I("s_nop 0")
        I(f"buffer_load_dwordx4 v[32:33], {SX}, 0 idxen offen lds")
        for base, off in ((16, 0), (12, 26624), (14, 18432)):
            I(f"s_add_u32 m0, s43, {L_WST+off}")
            I("s_nop 0")
            I(f"global_load_lds_dwordx4 v28, s[{base}:{base+1}]")
    if P['bgp'] == 2: bg_b()
    zst(3, 4)
    I(f"s_waitcnt vmcnt({2+n1+(4 if P['bgp'] == 2 else 0)})")
    stamp(2); zst(3, 5)
    for j in range(5): I(f"v_mul_u32_u24 v{TMP+j}, 214749, v{DST+j}")
    for j in range(5): I(f"v_lshrrev_b32 v{TMP+j}, 21, v{TMP+j}")
    for j in range(5): I(f"v_and_b32 v{BAD+j}, -4, v{TMP+j}")
    for j in range(4): I(f"ds_add_rtn_u32 v{RK+j}, v{BAD+j}, v11 offset:{L_HIST}")
    I("s_mov_b64 exec, s[44:45]")
    I(f"ds_add_rtn_u32 v{RK+4}, v{BAD+4}, v11 offset:{L_HIST}")
    I("s_mov_b64 exec, -1")
    if P['wbl']:
        wb_loads(67); n1 += 2
    if P['bgp'] == 0: bg_b()
    n1 += 4 if P['bgp'] != 9 else 0
    for j in range(5): I(f"v_lshl_or_b32 v{DST+j}, v{DST+j}, 26, v{62+j}")
    I("s_waitcnt lgkmcnt(0)")
    I("s_barrier")
    zst(3, 6); zst(4, 2)
    I(f"ds_read_b128 v[168:171], v1 offset:{L_HIST}")
    I("s_mov_b64 exec, 0xffff")
    I(f"ds_read_b64 v[180:181], v14 offset:{L_HIST}")
    I("s_mov_b64 exec, -1")
    if P['bgp'] == 1: bg_b()
    nx0 = xq('xq0'); n1 += nx0
    I(f"s_mul_i32 s{S_TAG}, s{S_TAG}, 1664525")
    I(f"s_add_u32 s{S_TAG}, s{S_TAG}, 1013904223")
    I(f"s_mul_i32 s42, s2, {OSTR}")
    I(f"s_add_u32 s42, s42, {OFF_OFF}")
    I("s_waitcnt lgkmcnt(0)")
    zst(4, 3)
    for j in range(4): I(f"v_add_u32 v{168+j}, 21846, v{168+j}")
    for j in range(4): I(f"v_lshrrev_b32 v{168+j}, 15, v{168+j}")
    I("v_add_u32 v173, v168, v169")
    I("v_add_u32 v174, v173, v170")
    I("v_add_u32 v175, v174, v171")
    I("v_mov_b32 v172, v175")
    fill  = [f"v_mul_u32_u24 v{180+j}, 6, v{180+j}" if False else f"v_lshl_add_u32 v{180+j}, v{180+j}, 1, v{180+j}" for j in range(2)]
    fill += [f"v_lshrrev_b32 v{180+j}, 15, v{180+j}" for j in range(2)]
    fill += [f"v_mov_b32 v169, s{S_TAG}", f"v_mov_b32 v171, s{S_TAG}"]
    fill += [f"v_lshrrev_b32 v{RK+j}, 13, v{RK+j}" for j in range(5)]
    dpp_scan(172, fill)
    I("v_sub_u32 v176, v172, v175")
    I("v_readlane_b32 s3, v172, 63")
    I("v_add_lshl_u32 v177, v176, v168, 2")
    I("v_add_lshl_u32 v178, v176, v173, 2")
    I("v_add_lshl_u32 v179, v176, v174, 2")
    I("v_lshlrev_b32 v176, 2, v176")
    zst(4, 4)
    I(f"ds_write_b128 v1, v[176:179] offset:{L_START}")
    for j in range(5): I(f"ds_read_b32 v{TMP+j}, v{BAD+j} offset:{L_START}")
    I("s_mov_b64 exec, 0xffff")
    I(f"ds_read_b64 v[182:183], v14 offset:{L_START}")
    I("s_mov_b64 exec, -1")
    I("s_add_u32 s3, s3, 7")
    I("s_lshr_b32 s3, s3, 3")
    I("v_cmp_gt_u32 vcc, s3, v15")
    I("v_lshlrev_b32 v15, 1, v14")
    I("s_waitcnt lgkmcnt(0)")
    zst(4, 5)
    for j in range(5): I(f"v_add_lshl_u32 v{TMP+j}, v{TMP+j}, v{RK+j}, 2")
    I("v_lshl_or_b32 v168, v180, 16, v182")
    I("v_lshl_or_b32 v170, v181, 16, v183")
    I("s_mov_b64 exec, 0xffff")
    I(f"buffer_store_dwordx4 v[168:171], v15, {SW}, s42 offen sc1")
    I("s_mov_b64 exec, -1")
    zst(4, 6)
    I(f"s_waitcnt vmcnt({n1+1})")
    zst(4, 7)
    for j in range(5): I(f"v_lshl_or_b32 v{DST+j}, v{SRC+j}, 12, v{DST+j}")
    for j in range(4): I(f"ds_write_b32 v{TMP+j}, v{DST+j} offset:{L_STAGE}")
    I("s_mov_b64 exec, s[44:45]")
    I(f"ds_write_b32 v{TMP+4}, v{DST+4} offset:{L_STAGE}")
    I("s_mov_b64 exec, -1")
    nx1 = xq('xq1')
    I(f"s_mul_i32 s3, s2, {RSTR}")
    I(f"s_add_u32 s3, s3, {REC_OFF}")
    I("s_waitcnt lgkmcnt(0)")
    zst(4, 8)
    I("s_barrier")
    zst(3, 7); zst(4, 9)
    I(f"ds_read_b128 v[120:123], v23 offset:{L_STAGE}")
    I(f"ds_read_b128 v[124:127], v31 offset:{L_STAGE}")
    I("s_waitcnt lgkmcnt(1)")
    I(f"v_mov_b32 v123, s{S_TAG}")
    I(f"buffer_store_dwordx4 v[120:123], v23, {SW}, s3 offen sc1")
    I("s_waitcnt lgkmcnt(0)")
    I(f"v_mov_b32 v127, s{S_TAG}")
    I("s_mov_b64 exec, vcc")
    I(f"buffer_store_dwordx4 v[124:127], v31, {SW}, s3 offen sc1")
    I("s_mov_b64 exec, -1")
    stamp(3); zst(3, 8); zst(4, 10)
    nx2 = xq('xq2')
    poll = f"buffer_load_dwordx2 v[12:13], v3, {SW}, 0 offen sc1"
    if P['ppos'] in (3, 4, 5, 6): sort_consts_a()
    if P['ppos'] == 3:
        I(poll); nx2 += 1
    if P['pf'] == 1: prefill()
    I(f"s_mov_b32 s{S_C}, 0xbfb8aa3b")
    I(f"v_add_u32 v30, {L_WST}, v30")
    I(f"v_add_u32 v31, {L_WST+8192}, v28")
    I(f"s_waitcnt vmcnt({3+nx0+nx1+nx2})")
    if not P['wsc'] and not P['msc']:
        for j in range(8):
            I(f"v_and_b32 v{141+2*j}, 0xffff0000, v{WB+j}")
            I(f"v_lshlrev_b32 v{140+2*j}, 16, v{WB+j}")
        for j in range(16): I(f"v_mul_f32 v{140+j}, s{S_C}, v{140+j}")
        for j in range(8):  I(f"v_cvt_pk_bf16_f32 v{WB+j}, v{140+2*j}, v{141+2*j}")
    I(f"ds_write_b128 v31, {vr(WB,4)}")
    I("s_mov_b64 exec, 0xffff")
    I(f"ds_write_b128 v30, {vr(WB+4,4)}")
    I("s_mov_b64 exec, -1")
    if P['ppos'] == 4: I(poll)
    if P['bgv']:
        I(f"v_add_u32 v31, {L_WST}, v23")
        I(f"ds_write_b128 v23, v[88:91] offset:{L_XST}")
        for i, off in enumerate((0, 26624, 18432)):
            I(f"ds_write_b128 v31, {vr(92+4*i,4)} offset:{off}")
    if P['ppos'] == 6: I(poll)
    I("s_waitcnt lgkmcnt(0)")
    I("s_barrier")
    if P['ppos'] == 5: I(poll)
    zst(5, 2)
    for s in range(4):
        I(f"ds_read_b128 {vr(104+4*s,4)}, v{56+s}")
        for o in tr_quad(72+4*s, 67, 16*s): I(o)
    if P['ppos'] not in (3, 4, 5, 6): sort_consts_a()
    rec_preset()
    I(f"v_and_b32 v{N8}, 31, v7")
    I(f"v_lshlrev_b32 v{N8}, 3, v{N8}")
    I(f"v_mov_b32 v{N8+1}, v{N8}")
    I(f"s_mul_i32 s43, s{S_MT}, {32*NSTR}")
    I(f"v_add3_u32 v54, v54, s43, v{N8}")
    poll = f"buffer_load_dwordx2 v[12:13], v3, {SW}, 0 offen sc1"
    if P['ppos'] == 0: I(poll)
    I("s_waitcnt lgkmcnt(0)")
    nx4 = xq('xq4')
    wl = []
    for s in range(5):
        for n in range(2): wl += tr_quad(WZ+(2*s+n)*4, (TR0, TR1)[n], 64+16*s)
    for s in range(4):
        for n in range(2): wl += tr_quad(WV+(2*s+n)*4, (TR0, TR1)[n], 144+16*s)
    for s in range(4):
        I(f"v_mfma_f32_32x32x16_bf16 v[88:103], {vr(104+4*s,4)}, {vr(72+4*s,4)}, {'0' if s==0 else 'v[88:103]'}")
        for o in wl[3*s:3*s+3]: I(o)
    def wrest():
        for i in range(12, 36):
            if i % 8 == 4: I("s_waitcnt lgkmcnt(4)")
            I(wl[i])
    if not P['wlate']: wrest()
    if P['psl']: I(f"s_sleep {P['psl']}")
    if P['ppos'] == 1: I(poll)
    zst(5, 3)
    zst(3, 9); zst(5, 4)
    e("    ; ---- phase B: wait for the {offset, tag} entry of every chunk, fetch this bin's records")
    I(f"s_mov_b32 s{S_SLOW}, {P['forceslow']}")
    I(f"s_mov_b32 s{S_TMO}, 0x40000")
    I(f"s_mov_b32 s{S_DONE}, 0")
    I("s_mov_b64 s[44:45], s[20:21]")
    I(f"s_mov_b32 s{S_K}, {KBIG}")
    if P['msc'] in (1, 3):
        I("s_waitcnt lgkmcnt(0)")
        scale_weights((0, 1) if P['msc'] == 1 else (0,), T=172)
    if P['msc'] in (2, 3): I(f"s_mov_b32 s{S_SC}, 0")
    if P['warm']:
        I("s_waitcnt lgkmcnt(0)")
        for i in range(P['warm']): I(f"v_mfma_f32_32x32x16_bf16 v[140:155], {wz(i%5,0)}, {wv(i%4,1)}, 0")
    I(f"s_waitcnt vmcnt({nx4})")
    L("B_poll")
    I(f"v_cmpx_ne_u32 vcc, s{S_TAG}, v13")
    I("s_cbranch_execz B_polled")
    I(f"s_sub_u32 s{S_TMO}, s{S_TMO}, 1")
    I("s_cbranch_scc1 B_nopoll")
    I(poll)
    I("s_waitcnt vmcnt(0)")
    I("s_branch B_poll")
    L("B_nopoll")
    I(f"s_mov_b32 s{S_TMO}, 0")
    I("v_mov_b32 v12, 0")
    L("B_polled")
    I("s_mov_b64 exec, -1")
    stamp(4); zst(3, 10); zst(5, 5)
    if P['stamp'] == 2:
        I(f"s_sub_u32 s85, 0x40000, s{S_TMO}")
        I("s_lshl_b32 s85, s85, 8")
        I(f"s_add_u32 s85, s85, s{S_TMO}")
    rec_addr()
    if P['rsl']: I(f"s_sleep {P['rsl']}")
    rec_loads("" if P['rplain'] else " sc1")
    if P['wlate']: wrest()
    I(f"s_cmp_eq_u32 s{S_MT}, 0")
    I("s_cselect_b32 exec_hi, -1, 0")
    I("s_cselect_b64 s[42:43], -1, 0")
    I("s_cmp_eq_u32 s44, 0")
    I("s_cbranch_scc1 B_xa")
    I("s_lshl_b32 s45, s45, 8")
    I("v_add_u32 v54, s45, v54")
    if P['xud']:
        I("s_mov_b64 exec, -1")
        for r in range(0, 16, 2): I(f"v_mov_b64 {vr(72+r,2)}, {vr(88+r,2)}")
        I("v_mov_b64 v[56:57], 0")
        I("v_mov_b64 v[58:59], 0")
        I(f"s_mul_i32 s3, s{S_WV}, {10*NSTR}")
        I(f"s_sub_u32 s3, s3, {40*NSTR-256}")
        I("v_lshrrev_b32 v60, 5, v7")
        I(f"v_mul_u32_u24 v60, {NSTR}, v60")
        I(f"v_lshl_add_u32 v60, v{N8}, 1, v60")
        I("v_add_u32 v60, s3, v60")
        I("s_waitcnt lgkmcnt(4)")
        for r in range(5): I(f"ds_write_b128 v60, v[56:59] offset:{2*NSTR*r}")
    else:
        for r in range(16): I(f"v_cvt_f64_f32 {vr(56+2*r,2)}, v{88+r}")
        I("s_waitcnt lgkmcnt(4)")
        for r in range(8): I(f"ds_write_b64 v54, {vr(56+2*r,2)} offset:{256+NSTR*r}")
        I("s_mov_b64 exec, s[42:43]")
        I("s_waitcnt lgkmcnt(4)")
        for r in range(8, 16): I(f"ds_write_b64 v54, {vr(56+2*r,2)} offset:{256+NSTR*r}")
    I("s_branch B_xa_done")
    L("B_xa")
    I("s_lshl_b32 s45, s45, 2")
    I("v_add_u32 v54, s45, v54")
    for r in range(16): I(f"v_mul_f32 v{72+r}, s{S_C}, v{88+r}")
    for r in range(16): I(f"v_exp_f32 v{56+r}, v{72+r}")
    I("v_max_f32 v88, |v72|, |v73|")
    for r in range(1, 8): I(f"v_max3_f32 v88, |v{72+2*r}|, |v{73+2*r}|, v88")
    I("v_cmp_lt_f32 vcc, 0x42700000, v88")
    I("v_mov_b32 v89, 1")
    I(f"v_mov_b32 v90, {L_FLG}")
    I("s_waitcnt lgkmcnt(4)")
    for r in range(8): I(f"ds_write_b32 v54, v{56+r} offset:{NSTR*r}")
    I("s_mov_b64 exec, s[42:43]")
    I("s_waitcnt lgkmcnt(4)")
    for r in range(8, 16): I(f"ds_write_b32 v54, v{56+r} offset:{NSTR*r}")
    I("s_mov_b64 exec, vcc")
    I("ds_write_b32 v90, v89")
    L("B_xa_done")
    I("s_mov_b64 exec, -1")
    masks()
    sort_consts_b()
    I(f"s_mov_b32 s{S_E}, s6")
    I(f"s_and_b32 s{S_E+1}, s7, 0xffff")
    I(f"s_or_b32 s{S_E+1}, s{S_E+1}, {32<<16}")
    I(f"s_mov_b32 s{S_E+2}, 640000")
    I(f"s_mov_b32 s{S_E+3}, 0x20000")
    I(f"s_mov_b32 s{S_O}, s18")
    I(f"s_and_b32 s{S_O+1}, s19, 0xffff")
    I(f"s_mov_b32 s{S_O+2}, 1280000")
    I(f"s_mov_b32 s{S_O+3}, 0x20000")
    I(f"s_movk_i32 s{S_FC}, 0xfc")
    I(f"s_lshl_b32 s{S_ROT}, s{S_NB0}, 26")
    I(f"s_movk_i32 s{S_INC}, 512")
    I(f"s_movk_i32 s{S_INC+1}, 512")
    I(f"s_mov_b32 s{S_ONE}, 1.0")
    I(f"s_mov_b32 s{S_ONE+1}, 1.0")
    for i in range(1, 4): I(f"v_xor_b32 v{IDX+2*i+1}, {16*i}, v{IDX+1}")
    if P['m0t']:
        for i in range(3): I(f"v_add_u32 v{IDX+2*i+1}, {3072-1024*i}, v{IDX+2*i+1}")
        I(f"s_sub_u32 s{S_X}, s{S_X}, 3072")
        I(f"s_subb_u32 s{S_X+1}, s{S_X+1}, 0")
    I(f"v_and_b32 v{LC}, 8, v7")
    I(f"v_and_b32 v{LC+1}, 14, v7")
    I(f"v_lshl_or_b32 v{LC+1}, v{LC+1}, 2, 4")
    I("v_lshrrev_b32 v11, 4, v7")
    I("v_xor_b32 v11, v7, v11")
    I("v_and_b32 v11, 1, v11")
    I(f"v_lshlrev_b32 v{IDX+9}, 4, v11")
    zst(5, 6)
    if P['warm']:
        for i in range(P['warm']): I(f"v_mfma_f32_32x32x16_bf16 v[140:155], {wz(i%5,0)}, {wv(i%4,1)}, 0")
        I("s_nop 15")
    nx3 = xq('xq3')
    I(f"s_waitcnt vmcnt({nx3}) lgkmcnt(2)")
    L("B_verify")
    zst(5, 7)
    e("    ; every fetched quad must carry this launch's tag, otherwise fetch again")
    I(f"v_min3_u32 v10, v{REC+3}, v{REC+7}, v{REC+11}")
    I(f"v_max3_u32 v11, v{REC+3}, v{REC+7}, v{REC+11}")
    I(f"v_min3_u32 v10, v{REC+15}, v{REC+19}, v10")
    I(f"v_max3_u32 v11, v{REC+15}, v{REC+19}, v11")
    I(f"v_cmp_ne_u32 vcc, s{S_TAG}, v10")
    I(f"v_cmp_ne_u32 s[42:43], s{S_TAG}, v11")
    I("s_or_b64 exec, vcc, s[42:43]")
    I("s_cbranch_scc0 B_sort")
    I(f"s_sub_u32 s{S_TMO}, s{S_TMO}, 1")
    I("s_cbranch_scc1 B_giveup")
    rec_loads()
    I("s_waitcnt vmcnt(0)")
    I("s_branch B_verify")
    with cold():
        L("B_giveup")
        I("s_mov_b64 exec, -1")
        I(f"s_mov_b32 s{S_TMO}, 0")
        I("v_mov_b32 v4, 0")
        masks()
        I("s_branch B_sort")
    L("B_sort")
    I("s_mov_b64 exec, -1")
    stamp(5); zst(1, 2); zst(5, 8)
    if P['zoom'] == 5:
        I(f"s_sub_u32 s93, 0x40000, s{S_TMO}")
        I("s_add_u32 s93, s93, s85")
    if P['stamp'] == 2: I(f"s_sub_u32 s85, s85, s{S_TMO}")
    for i in range(12): I(f"v_subrev_u32 v{rec(i)}, s{S_ROT}, v{rec(i)}")
    def pair(i):
        return [f"v_and_b32 v{PAIR+2*i+1}, 0xfff, v{rec(i)}", f"v_add_u32 v{PAIR+2*i+1}, v{PAIR+2*i+1}, v9", f"v_bfe_u32 v{PAIR+2*i}, v{rec(i)}, 12, 14"]
    for i in range(12): I(dad(i))
    def epf():
        pm = ["s[14:15]", "s[16:17]", "s[18:19]", "s[42:43]", "s[44:45]", "s[6:7]", "vcc"]
        if P['epf']:
            for i in range(7): I(f"v_cmp_gt_u32 {pm[i]}, {4*P['epf']}, v{DAD+i}")
        for i in range(7):
            for o in pair(i)[:2]: I(o)
        if P['epf']:
            for i in range(7):
                I(f"s_and_b64 exec, {pm[i]}, {mk(i)}")
                I(f"buffer_load_dword v53, v{PAIR+2*i+1}, {SE}, 0 idxen")
            I("s_mov_b64 exec, -1")
        if P['epx']:
            for i in range(7): I(f"v_cmp_gt_u32 {pm[i]}, {4*P['epx']}, v{DAD+i}")
            for i in range(7): I(pair(i)[2])
            for i in range(7):
                I(f"s_and_b64 exec, {pm[i]}, {mk(i)}")
                I(f"buffer_load_dword v53, v{PAIR+2*i}, {SX}, 0 idxen")
            I("s_mov_b64 exec, -1")
    if P['epos'] == 0: epf()
    L("B_count")
    I("v_mov_b32 v11, 8")
    for i in range(12):
        I(f"s_mov_b64 exec, {mk(i)}")
        I(f"ds_add_rtn_u32 v{RNK+i}, v{DAD+i}, v11 offset:{L_CNT}")
    I("s_mov_b64 exec, -1")
    if P['epos'] == 1: epf()
    for i in range(12):
        for o in (pair(i)[2:] if i < 7 else pair(i)): I(o)
    I(f"v_mov_b32 v10, {L_LIST}")
    for h in range(2):
        I(f"s_waitcnt lgkmcnt(6)")
        for i in range(6*h, 6*h+6): I(f"v_lshl_add_u32 v{BAS+i}, v{DAD+i}, 8, v{RNK+i}")
        for i in range(6*h, 6*h+6): I(f"v_add_u32 v{BAS+i}, v10, v{BAS+i}")
        for i in range(6*h, 6*h+6):
            I(f"s_mov_b64 exec, {mk(i)}")
            I(f"ds_write_b64 v{BAS+i}, {vr(PAIR+2*i,2)}")
    I("s_mov_b64 exec, -1")
    I(f"s_or_b64 vcc, s[46:47], {mk(12)}")
    I("s_cbranch_scc1 B_p1x")
    with warm():
        L("B_p1x")
        I("s_waitcnt lgkmcnt(0)")
        I(f"s_lshr_b32 s3, s{S_ROT}, 24")
        for i in range(12, 15): I(dad(i))
        for i in range(12, 15): I(f"v_subrev_u32 v{DAD+i}, s3, v{DAD+i}")
        for i in range(12, 15): I(f"v_and_b32 v{DAD+i}, s{S_FC}, v{DAD+i}")
        for i in range(12, 15):
            for o in pair(i): I(o)
        for i in range(12, 15):
            I(f"s_mov_b64 exec, {mk(i)}")
            I(f"ds_add_rtn_u32 v{RNK+i}, v{DAD+i}, v11 offset:{L_CNT}")
        I("s_mov_b64 exec, -1")
        I("s_waitcnt lgkmcnt(0)")
        for i in range(12, 15): I(f"v_lshl_add_u32 v{BAS+i}, v{DAD+i}, 8, v{RNK+i}")
        for i in range(12, 15): I(f"v_add_u32 v{BAS+i}, v10, v{BAS+i}")
        I(f"v_mov_b32 v10, {L_FLG+4}")
        for i in range(12, 15):
            I(f"s_mov_b64 exec, {mk(i)}")
            I(f"ds_write_b64 v{BAS+i}, {vr(PAIR+2*i,2)}")
        I("s_mov_b64 exec, s[46:47]")
        I("ds_write_b32 v10, v11")
        I("s_mov_b64 exec, -1")
        I("s_branch B_p1done")
    L("B_p1done")
    I("v_lshlrev_b32 v10, 2, v7")
    I(f"v_mov_b32 v24, {L_FLG}")
    I(f"v_add_u32 v25, {L_XST}, v10")
    I("s_waitcnt lgkmcnt(0)")
    zst(1, 3)
    I("s_barrier")
    zst(1, 4)
    I(f"ds_read_b32 v12, v10 offset:{L_CNT}")
    I("ds_read_b64 v[18:19], v24")
    I("s_waitcnt lgkmcnt(0)")
    I("v_add_u32 v13, 56, v12")
    I("v_lshrrev_b32 v13, 3, v13")
    I("v_and_b32 v13, -8, v13")
    I("v_mov_b32 v1, v13")
    dpp_scan(1, [f"v_readfirstlane_b32 s{S_MORE}, v19", "v_readfirstlane_b32 s3, v18", f"v_cmp_lt_u32 vcc, {8*NCAP}, v12",
                 f"v_mov_b64 {vr(AG[1],2)}, {vr(N8,2)}"])
    I("v_sub_u32 v13, v1, v13")
    I(f"v_readlane_b32 s{S_TOT}, v1, 63")
    I("ds_write2_b32 v25, v13, v1 offset1:1")
    I("ds_read2_b32 v[16:17], v20 offset1:1")
    I(f"s_or_b32 s{S_SLOW}, s{S_SLOW}, s3")
    I("s_cbranch_vccnz B_compact")
    with cold():
        L("B_compact")
        I(f"s_cmp_gt_u32 s{S_TOT}, {LCAP-32}")
        I("s_cselect_b32 s3, 1, 0")
        I("s_waitcnt lgkmcnt(0)")
        I("v_mov_b32 v174, v16")
        I("v_mov_b32 v175, v17")
        I("v_mov_b32 v176, v10")
        I("s_barrier")
        prefill_list()
        I("s_cmp_eq_u32 s3, 0")
        I("s_cbranch_scc1 B_compact2")
        I("v_mov_b32 v11, 0")
        I(f"ds_write_b32 v176, v11 offset:{L_CNT}")
        I(f"s_mov_b32 s{S_K}, {KSMALL}")
        masks()
        I("s_waitcnt lgkmcnt(0)")
        I("s_barrier")
        I("s_branch B_count")
        L("B_compact2")
        I("s_waitcnt lgkmcnt(0)")
        I("s_barrier")
        I(f"v_mov_b32 v10, {L_LIST}")
        for i in range(15):
            I(f"s_mov_b64 exec, {mk(i)}")
            I(f"ds_read_b32 v{BAS+i}, v{DAD+i} offset:{L_XST}")
            I("s_waitcnt lgkmcnt(0)")
            I(f"v_lshl_add_u32 v{BAS+i}, v{BAS+i}, 3, v{RNK+i}")
            I(f"v_add_u32 v{BAS+i}, v10, v{BAS+i}")
            I(f"ds_write_b64 v{BAS+i}, {vr(PAIR+2*i,2)}")
        I("s_mov_b64 exec, -1")
        I("v_mov_b32 v16, v174")
        I("v_mov_b32 v17, v175")
        I("v_lshl_add_u32 v172, v16, 3, v21")
        I("v_add_u32 v172, v172, v10")
        I("s_branch B_groups")
    L("B_groups")
    if P['ofirst']:
        I(f"s_add_u32 s{S_N}, s{S_TOT}, 31")
        I(f"s_lshr_b32 s{S_N}, s{S_N}, 5")
        I(f"s_min_u32 s3, s{S_N}, 4")
        I(f"s_add_u32 s{S_N}, s{S_N}, 11")
        I(f"s_sub_u32 s{S_N}, s{S_N}, s{S_WV}")
        I(f"s_lshr_b32 s{S_N}, s{S_N}, 3")
        I(f"s_max_u32 s{S_N}, s{S_N}, 1")
        I(f"s_cmp_ge_u32 s{S_WV}, s3")
        I(f"s_subb_u32 s{S_N}, s{S_N}, 0")
    else:
        I(f"s_add_u32 s{S_N}, s{S_TOT}, {31+7*32}")
        I(f"s_lshr_b32 s{S_N}, s{S_N}, 5")
        I(f"s_sub_u32 s{S_N}, s{S_N}, s{S_WV}")
        I(f"s_lshr_b32 s{S_N}, s{S_N}, 3")
    if P['bench_n']: I(f"s_mov_b32 s{S_N}, {P['bench_n']}")
    zst(1, 5)
    I("s_waitcnt lgkmcnt(0)")
    I("v_add_u32 v16, v16, v22")
    I(f"v_add_u32 v17, {L_GT}, v17")
    I("v_add_u32 v18, 96, v16")
    I("v_cmp_lt_u32 s[42:43], v18, v17")
    I("v_cmpx_lt_u32 vcc, v16, v17")
    I("ds_write_b64 v16, v[172:173]")
    I("s_mov_b64 exec, -1")
    I(f"s_or_b32 s3, s42, s43")
    I(f"s_or_b32 s3, s3, s{S_SLOW}")
    I("s_cbranch_scc1 B_p2x")
    with warm():
        L("B_p2x")
        I("s_mov_b64 exec, s[42:43]")
        L("B_grp_loop")
        I("s_waitcnt lgkmcnt(0)")
        I("v_add_u32 v172, 768, v172")
        I("ds_write_b64 v18, v[172:173]")
        I("v_add_u32 v18, 96, v18")
        I("v_cmpx_lt_u32 vcc, v18, v17")
        I("s_cbranch_execnz B_grp_loop")
        I("s_mov_b64 exec, -1")
        I(f"s_cmp_eq_u32 s{S_SLOW}, 0")
        I("s_cbranch_scc1 B_p2done")
        L("B_warm_end")
        I(f"s_cmp_lg_u32 s{S_DONE}, 0")
        I("s_cbranch_scc1 B_p2done")
        I(f"s_cmp_gt_u32 s{S_WV}, 3")
        I("s_cbranch_scc1 B_p2done")
        I(f"s_cmp_eq_u32 s{S_MT}, 0")
        I("s_cselect_b32 exec_hi, -1, 0")
        I("s_cselect_b64 s[42:43], -1, 0")
        I("s_waitcnt lgkmcnt(0)")
        for r in range(8): I(f"ds_write_b32 v54, v{72+r} offset:{NSTR*r}")
        I("s_mov_b64 exec, s[42:43]")
        I("s_waitcnt lgkmcnt(0)")
        for r in range(8, 16): I(f"ds_write_b32 v54, v{72+r} offset:{NSTR*r}")
        I("s_mov_b64 exec, -1")
        I("s_branch B_p2done")
    L("B_p2done")
    if P['ofirst']: I(f"s_cmp_gt_u32 s{S_WV}, 3")
    else: I(f"s_sub_u32 s{S_N}, s{S_N}, 1")
    I("s_waitcnt lgkmcnt(0)")
    zst(1, 7)
    I("s_barrier")
    stamp(6)
    zst(1, 8)
    if not P['ofirst']: I("s_cbranch_scc1 B_loop_done")
    if P['ofirst']:
        I("s_cbranch_scc1 B_young")
        I(f"s_sub_u32 s{S_N}, s{S_N}, 1")
        I("s_cbranch_scc1 B_loop_done")
        I("s_setprio 3")
        I(base_read(LB, 0.5)); I(base_read(LB+2, 1)); I(base_read(LB+4, 2)); I(grp_read(AG[0], 0.5))
        for i in range(0, 8, 2): I(f"v_mov_b64 {vr(ACC+i,2)}, 0")
        I("s_waitcnt lgkmcnt(3)")
        I(base_add(LB))
        for s in idx_reads(): I(s)
        I(f"v_add_u32 v{GQ}, 768, v{GQ}")
        I("s_waitcnt lgkmcnt(0)")
        I(base_add(LB+2))
        I(f"v_lshl_add_u64 {vr(AG[0],2)}, {vr(AG[0],2)}, 0, {vr(N8,2)}")
        ix = idx_reads()
        for i, d in enumerate(dma_tile(40960)):
            for s in d: I(s)
            I(ix[i])
        I(base_add(LB+4))
        I("s_waitcnt lgkmcnt(0)")
        for d in dma_tile():
            for s in d: I(s)
        I("s_setprio 0")
        for s in idx_reads() + ea_reads(AG[0]): I(s)
        if P['msc'] in (2, 3):
            I(f"s_cmp_lg_u32 s{S_SC}, 0")
            I("s_cbranch_scc1 B_sc1")
            I(f"s_mov_b32 s{S_SC}, 1")
            scale_weights((0, 1) if P['msc'] == 2 else (1,))
            L("B_sc1")
        I("s_waitcnt vmcnt(5)")
        for s in op_reads(40960): I(s)
        I("s_waitcnt lgkmcnt(0)")
        stamp(7)
        for m in z_mfmas(Z[0], order=(4,0,1,2,3)): I(m)
        I("s_nop 6")
        I("s_branch B_z0done")
        L("B_young")
        if P['ofirst'] > 1: I(f"s_sleep {P['ofirst']}")
        if P['xud']:
            I(f"s_cmp_lg_u32 s{S_DONE}, 0")
            I("s_cbranch_scc1 B_xu_done")
            I("s_cmp_lg_u32 s2, 0")
            I("s_cbranch_scc1 B_nogen")
            I(f"v_mov_b32 v120, s{S_TAG}")
            I("s_mov_b64 exec, 1")
            I(f"buffer_store_dword v120, off, {SW}, 0 offset:{GEN_OFF} sc1")
            I("s_mov_b64 exec, -1")
            L("B_nogen")
            for r in range(16): I(f"v_cvt_f64_f32 {vr(88+2*r,2)}, v{72+r}")
            I(f"s_cmp_eq_u32 s{S_MT}, 0")
            I("s_cselect_b32 exec_hi, -1, 0")
            I("s_cselect_b64 s[42:43], -1, 0")
            for r in range(8): I(f"ds_add_f64 v54, {vr(88+2*r,2)} offset:{256+NSTR*r}")
            I("s_mov_b64 exec, s[42:43]")
            I("s_waitcnt lgkmcnt(4)")
            for r in range(8, 16): I(f"ds_add_f64 v54, {vr(88+2*r,2)} offset:{256+NSTR*r}")
            I("s_mov_b64 exec, -1")
            I("s_waitcnt lgkmcnt(0)")
            L("B_xu_done")
        I(f"s_sub_u32 s{S_N}, s{S_N}, 1")
        I("s_cbranch_scc1 B_loop_done")
        if P['deep']:
            I(f"s_cmp_lg_u32 s{S_SLOW}, 0")
            I("s_cbranch_scc1 B_shallow")
            I(f"s_setprio {P['yp']}")
            for k in range(4): I(base_read(LB+2*k, k))
            I(grp_read(AG[0], 0))
            for i in range(0, 8, 2): I(f"v_mov_b64 {vr(ACC+i,2)}, 0")
            I("s_waitcnt lgkmcnt(4)")
            I(base_add(LB))
            for s in idx_reads(): I(s)
            I(f"v_add_u32 v{GQ}, 1024, v{GQ}")
            I("s_waitcnt lgkmcnt(0)")
            I(base_add(LB+2))
            I(f"v_lshl_add_u64 {vr(AG[0],2)}, {vr(AG[0],2)}, 0, {vr(N8,2)}")
            ix = idx_reads()
            for i, d in enumerate(dma_tile(40960)):
                for s in d: I(s)
                I(ix[i])
            I(base_add(LB+4))
            I("s_waitcnt lgkmcnt(0)")
            for d in dma_tile():
                for s in d: I(s)
            I("s_setprio 0")
            for s in idx_reads() + ea_reads(AG[0]): I(s)
            I(base_add(LB+6))
            I("s_waitcnt vmcnt(5)")
            for s in op_reads(40960): I(s)
            I("s_waitcnt lgkmcnt(0)")
            stamp(7)
            for m in z_mfmas(Z[0], order=(4,0,1,2,3)): I(m)
            hm = hv_mfmas()
            I(hm[0]); I(hm[1])
            I("s_nop 9")
            for i in range(32):
                if i % 3 == 0 and 2 + i//3 < 8: I(hm[2 + i//3])
                I(f"v_exp_f32 v{Z[0]+i}, v{Z[0]+i}")
            for d in dma_tile(40960):
                for s in d: I(s)
            for s in idx_reads(): I(s)
            if P['zoom'] == 6:
                I("v_mov_b32 v12, 0")
                I("s_mov_b32 s86, 0")
            main_loop("D", False, True)
            L("B_shallow")
    else:
        I("s_setprio 3")
    I(base_read(LB, 0)); I(base_read(LB+2, 1)); I(base_read(LB+4, 2)); I(grp_read(AG[0], 0))
    for i in range(0, 8, 2): I(f"v_mov_b64 {vr(ACC+i,2)}, 0")
    I("s_waitcnt lgkmcnt(3)")
    I(base_add(LB))
    for s in idx_reads(): I(s)
    I(f"v_add_u32 v{GQ}, 768, v{GQ}")
    I("s_waitcnt lgkmcnt(0)")
    I(base_add(LB+2))
    I(f"v_lshl_add_u64 {vr(AG[0],2)}, {vr(AG[0],2)}, 0, {vr(N8,2)}")
    for d in dma_tile():
        for s in d: I(s)
    I(f"s_setprio {P['zp']}")
    for s in idx_reads() + ea_reads(AG[0]): I(s)
    I(base_add(LB+4))
    zst(1, 9)
    if P['msc'] in (2, 3):
        I(f"s_cmp_lg_u32 s{S_SC}, 0")
        I("s_cbranch_scc1 B_sc2")
        I(f"s_mov_b32 s{S_SC}, 1")
        scale_weights((0, 1) if P['msc'] == 2 else (1,))
        L("B_sc2")
    if P['wsc']:
        I(f"s_cmp_lg_u32 s{S_DONE}, 0")
        I("s_cbranch_scc1 B_scaled")
        I("s_setprio 0")
        for b in range(0, 40, 8):
            for j in range(8):
                I(f"v_and_b32 v{121+2*j}, 0xffff0000, v{WZ+b+j}")
                I(f"v_lshlrev_b32 v{120+2*j}, 16, v{WZ+b+j}")
            for j in range(16): I(f"v_mul_f32 v{120+j}, s{S_C}, v{120+j}")
            for j in range(8):  I(f"v_cvt_pk_bf16_f32 v{WZ+b+j}, v{120+2*j}, v{121+2*j}")
        I("s_setprio 2")
        L("B_scaled")
    if P['warm']:
        for i in range(2*P['warm']): I(f"v_mfma_f32_32x32x16_bf16 v[152:167], {wz(i%5,0)}, {wv(i%4,1)}, 0")
    I("s_waitcnt vmcnt(0)")
    if P['ydel']:
        I(f"s_cmp_lt_u32 s{S_WV}, 4")
        I("s_cbranch_scc1 B_nodel")
        I(f"s_sleep {P['ydel']}")
        L("B_nodel")
    if P['odel']:
        I(f"s_bitcmp1_b32 s2, 3")
        I("s_cbranch_scc1 B_nodel2")
        I(f"s_sleep {P['odel']}")
        L("B_nodel2")
    for s in op_reads(): I(s)
    I("s_waitcnt lgkmcnt(0)")
    stamp(7)
    zst(1, 10)
    dm = dma_tile()
    for i, m in enumerate(z_mfmas(Z[0], order=(4,0,1,2,3))):
        if i % 2 == 1: I(dm[i//2][0])
        I(m)
        if i % 2 == 1: I(dm[i//2][2])
        if P['zsp'] and not P['zy']:
            for _ in range(P['zsp']): I("s_nop 7")
        if P['zsp'] and P['zy']:
            I(f"s_cmp_lt_u32 s{S_WV}, 4")
            I(f"s_cbranch_scc1 B_zs{i}")
            for _ in range(P['zsp']): I("s_nop 7")
            L(f"B_zs{i}")
    I("s_setprio 0")
    for s in idx_reads(): I(s)
    L("B_z0done")
    I(f"s_cmp_lg_u32 s{S_SLOW}, 0")
    I("s_cbranch_scc1 B_slow")
    hm = hv_mfmas()
    I(hm[0]); I(hm[1])
    I("s_nop 1")
    for i in range(32):
        if i % 3 == 0 and 2 + i//3 < 8: I(hm[2 + i//3])
        I(f"v_exp_f32 v{Z[0]+i}, v{Z[0]+i}")
    if P['zoom'] == 6:
        I("v_mov_b32 v12, 0")
        I("s_mov_b32 s86, 0")
    main_loop("F", False)
    with cold():
        L("B_slow")
        I("s_nop 15")
        t1_phase(Z[0], True)
        main_loop("S", True)
    def tail(u):
        zc = Z[u]
        L(f"B_tail{u}")
        I("s_waitcnt lgkmcnt(0)")
        for o in flush(AG[1-u]): I(o)
        e(".p2align 3")
        for r, f in pairs(): I(f"v_pk_fma_f32 {vr(zc+r,2)}, {vr(zc+r,2)}, {vr(f,2)}, s[{S_ONE}:{S_ONE+1}]")
        for i in range(32): I(f"v_rcp_f32 v{zc+i}, v{zc+i}")
        acc_phase(u, True)
    if P['tail']:
        tail(0)
        I("s_branch B_exit0")
        tail(1)
    L("B_exit1")
    I(f"v_mov_b64 {vr(AG[0],2)}, {vr(AG[1],2)}")
    L("B_exit0")
    for s in flush(AG[0]): I(s)
    L("B_loop_done")
    I("s_setprio 0")
    if P['zoom'] == 6:
        for i in range(14): I(f"v_writelane_b32 v12, s{48+i}, {i}")
        for i in range(14): I(f"v_writelane_b32 v12, s{62+i}, {16+i}")
        for r, l in ((90, 14), (91, 30), (92, 13), (93, 29)): I(f"v_writelane_b32 v12, s{r}, {l}")
        for s in ["s_memrealtime s[82:83]", "s_waitcnt lgkmcnt(0)", "s_mov_b32 m0, s86", "s_nop 0", "v_writelane_b32 v12, s82, m0",
                  "v_writelane_b32 v12, s84, 15", "s_lshl_b32 s3, s2, 3", f"s_add_u32 s3, s3, s{S_WV}", "s_lshl_b32 s3, s3, 7",
                  f"s_add_u32 s3, s3, {STAMP_OFF+0x100000}", "v_and_b32 v13, 63, v0", "v_lshl_add_u32 v13, v13, 2, s3",
                  "s_mov_b32 exec_hi, 0", "global_store_dword v13, v12, s[22:23]", "s_mov_b64 exec, -1"]: I(s)
    stamp(8)
    if P['ep']:
        I("v_lshrrev_b32 v1, 4, v0")
        I("v_and_b32 v2, 15, v0")
        I("v_lshlrev_b32 v12, 5, v2")
        I(f"v_mul_u32_u24 v1, {NSTR}, v1")
        I("v_add_u32 v12, v1, v12")
        I(f"s_lshr_b32 s42, s{S_NCNT}, 4")
        I(f"s_sub_u32 s42, s42, s{S_NB0}")
        I(f"s_lshl_b32 s42, s42, 4")
        I(f"s_sub_u32 s42, s42, 128")
        I(f"s_lshl_b32 s3, s{S_NB0}, 7")
        I("v_lshlrev_b32 v13, 3, v0")
        I("v_cmp_gt_u32 vcc, s42, v0")
    else:
        I("v_lshrrev_b32 v1, 3, v0")
        I("v_and_b32 v2, 7, v0")
        I("v_lshlrev_b32 v12, 6, v2")
        I(f"v_mul_u32_u24 v1, {NSTR}, v1")
        I("v_add_u32 v12, v1, v12")
        I(f"s_lshr_b32 s42, s{S_NCNT}, 4")
        I(f"s_sub_u32 s42, s42, s{S_NB0}")
        I(f"s_lshl_b32 s42, s42, 3")
        I(f"s_lshl_b32 s3, s{S_NB0}, 7")
        I("v_lshlrev_b32 v13, 4, v0")
        I("v_cmp_gt_u32 vcc, s42, v0")
    I(f"s_cmp_lg_u32 s{S_MORE}, 0")
    I("s_waitcnt lgkmcnt(0)")
    I("s_barrier")
    stamp(9)
    I("s_cbranch_scc1 B_round")
    with cold():
        L("B_round")
        I(f"s_add_u32 s{S_DONE}, s{S_DONE}, s{S_K}")
        I(f"s_mov_b32 s{S_K}, {KBIG}")
        sort_consts_a()
        I(poll)
        prefill()
        sort_consts_b()
        I("v_lshlrev_b32 v10, 2, v7")
        I("v_mov_b32 v11, 0")
        I(f"ds_write_b32 v10, v11 offset:{L_CNT}")
        I("s_waitcnt vmcnt(0)")
        rec_addr()
        I(f"v_subrev_u32 v4, s{S_DONE}, v4")
        I(f"s_mul_i32 s3, s{S_DONE}, 2731")
        I("s_lshr_b32 s3, s3, 13")
        I("s_lshl_b32 s3, s3, 4")
        I("v_add_u32 v1, s3, v1")
        rec_preset()
        rec_loads()
        masks()
        I("s_waitcnt vmcnt(0) lgkmcnt(0)")
        I("s_barrier")
        I("s_branch B_verify")
    opol = ("", " sc1", " nt")[P['o_pol']]
    def silu(n, base):
        for i in range(n): I(f"v_cvt_f32_f64 v{16+i}, {vr(base+2*i,2)}")
        for i in range(n): I(f"v_mul_f32 v{56+i}, s{S_C}, v{16+i}")
        for i in range(n): I(f"v_exp_f32 v{56+i}, v{56+i}")
        for i in range(n): I(f"v_add_f32 v{56+i}, 1.0, v{56+i}")
        for i in range(n): I(f"v_rcp_f32 v{56+i}, v{56+i}")
        for i in range(n): I(f"v_mul_f32 v{56+i}, v{16+i}, v{56+i}")
        for i in range(n//2): I(f"v_cvt_pk_bf16_f32 v{64+i}, v{56+2*i}, v{57+2*i}")
    if P['ep']:
        for i in range(2): I(f"ds_read_b128 {vr(72+4*i,4)}, v12 offset:{8*NSTR+256+16*i}")
        I(f"s_cmp_gt_u32 s{S_WV}, 1")
        I("s_cbranch_scc1 B_one")
        for i in range(2): I(f"ds_read_b128 {vr(80+4*i,4)}, v12 offset:{256+16*i}")
        I("s_setprio 1")
        I("s_waitcnt lgkmcnt(0)")
        silu(8, 72)
        I(f"buffer_store_dwordx2 v[64:65], v13, s[{S_O}:{S_O+3}], s3 offen offset:1024{opol}")
        I(f"buffer_store_dwordx2 v[66:67], v13, s[{S_O}:{S_O+3}], s3 offen{opol}")
        I("s_branch B_fin")
        L("B_one")
        I("s_waitcnt lgkmcnt(0)")
        silu(4, 72)
        I("s_mov_b64 exec, vcc")
        I(f"buffer_store_dwordx2 v[64:65], v13, s[{S_O}:{S_O+3}], s3 offen offset:1024{opol}")
    else:
        I(f"s_cmp_gt_u32 s{S_WV}, 4")
        I("s_cbranch_scc1 B_gen")
        for i in range(4): I(f"ds_read_b128 {vr(72+4*i,4)}, v12 offset:{256+16*i}")
        for h in range(2):
            I(f"s_waitcnt lgkmcnt({2-2*h})")
            for i in range(4*h, 4*h+4): I(f"v_cvt_f32_f64 v{16+i}, {vr(72+2*i,2)}")
            for i in range(4*h, 4*h+4): I(f"v_mul_f32 v{56+i}, s{S_C}, v{16+i}")
            for i in range(4*h, 4*h+4): I(f"v_exp_f32 v{56+i}, v{56+i}")
        for i in range(8): I(f"v_add_f32 v{56+i}, 1.0, v{56+i}")
        for i in range(8): I(f"v_rcp_f32 v{56+i}, v{56+i}")
        for i in range(8): I(f"v_mul_f32 v{56+i}, v{16+i}, v{56+i}")
        for i in range(4): I(f"v_cvt_pk_bf16_f32 v{64+i}, v{56+2*i}, v{57+2*i}")
        I("s_mov_b64 exec, vcc")
        I(f"buffer_store_dwordx4 v[64:67], v13, s[{S_O}:{S_O+3}], s3 offen" + ("", " sc1", " nt")[P['o_pol']])
        I("s_branch B_fin")
    L("B_gen")
    L("B_fin")
    if P['stamp']: I("s_waitcnt vmcnt(0)")
    stamp(10); stamp(11)
    stamp_flush()
    L("B_end")
    I("s_endpgm")
    main_out.extend(warm_out)
    main_out.extend(cold_out)

def kernel_probe():
    idx = P['probe']; op = "min" if P['pop'] else "max"
    e(".globl probe_kernel"); e(".p2align 8"); e(".type probe_kernel,@function")
    L("probe_kernel")
    for s in ["s_cmp_ge_u32 s2, 1", "s_cbranch_scc1 P_end", "s_load_dwordx2 s[8:9], s[0:1], 72", "v_mov_b32 v1, 0", "v_mov_b32 v2, -1",
              f"v_mov_b32 v3, {-1 if P['pop'] else 0}", "ds_write_b64 v1, v[2:3]", "v_lshlrev_b32 v5, 9, v0", f"v_add_u32 v5, {STAMP_OFF}, v5",
              "s_waitcnt lgkmcnt(0)", "s_barrier"]: I(s)
    for w in range(8):
        I(f"global_load_dword v7, v5, s[8:9] offset:{64*w}")
        I(f"global_load_dword v8, v5, s[8:9] offset:{64*w+4*idx}")
        I("s_waitcnt vmcnt(0)")
        I("ds_min_u32 v1, v7")
        I(f"ds_{op}_u32 v1, v8 offset:4")
        I("s_waitcnt lgkmcnt(0)")
    for s in ["s_barrier", "ds_read_b64 v[2:3], v1", "s_waitcnt lgkmcnt(0)", "v_readfirstlane_b32 s10, v2", "v_readfirstlane_b32 s11, v3", "s_nop 3",
              "s_sub_u32 s11, s11, s10", "s_min_u32 s11, s11, 10000", "s_mul_i32 s11, s11, 10", "s_add_u32 s11, s11, 10000"]: I(s)
    L("P_spin")
    for s in ["s_memrealtime s[12:13]", "s_waitcnt lgkmcnt(0)", "s_sub_u32 s12, s12, s10", "s_cmp_lt_u32 s12, s11", "s_cbranch_scc1 P_spin"]: I(s)
    L("P_end")
    I("s_endpgm")

def desc(name, vg, sg):
    e(f".amdhsa_kernel {name}")
    e(f"  .amdhsa_next_free_vgpr {vg}")
    e(f"  .amdhsa_next_free_sgpr {sg}")
    e(f"  .amdhsa_accum_offset {(vg+3)//4*4}")
    e("  .amdhsa_group_segment_fixed_size 0")
    e("  .amdhsa_kernarg_size 80")
    e("  .amdhsa_user_sgpr_count 2")
    e("  .amdhsa_user_sgpr_kernarg_segment_ptr 1")
    e("  .amdhsa_system_sgpr_workgroup_id_x 1")
    e(".end_amdhsa_kernel")

def main():
    ap = argparse.ArgumentParser()
    ap.add_argument("-o", default="standalone__edge_featured_mpnn_egc__graph.s")
    ap.add_argument("-D", action="append", default=[])
    a = ap.parse_args()
    for d in a.D:
        k, v = d.split("=")
        assert k in P, k
        P[k] = int(v)
    for l in open("standalone__edge_featured_mpnn_egc__graph.s.ref").read().split("\n")[:11]: e(l)
    for l in """
 One persistent workgroup per CU.  Workgroup g bins edges [2500g, 2500g+2500) by destination and publishes them in ws,
 then owns bin (g&7)*32 + (g>>3): it collects that bin's edges from all chunks, sorts them by node in LDS and runs
 32-edge tiles:  d = 1 + exp2(x[src]@B' + e@C') * exp2(x[dst]@A')  (B', C', A' carry -log2 e),  agg += (x[src]@v_w) / d.
 Bins with a node term beyond +-60 add the term before the exponential instead (S_ loop).
 Hand-offs are tagged with a per-launch value derived from a generation word in ws; skewed graphs take more rounds.
""".strip("\n").split("\n"): e(";" + l)
    if P['aslist']: e(f"; @launch kernel={KNAME} grid=({NW},1,1) block=(512,1,1) lds={LDS_B}")
    else:           e(f"; @launch grid=({NW},1,1) block=(512,1,1) lds={LDS_B}")
    if P['probe'] >= 0: e("; @launch kernel=probe_kernel grid=(1,1,1) block=(256,1,1) lds=64")
    e('.amdgcn_target "amdgcn-amd-amdhsa--gfx950"')
    e(".text")
    kernel()
    if P['probe'] >= 0: kernel_probe()
    e('.section .rodata,"a"')
    e(".p2align 6")
    desc(KNAME, 256, 102)
    if P['probe'] >= 0:
        e(".p2align 6")
        desc("probe_kernel", 16, 32)
    open(a.o, "w").write("\n".join(main_out) + "\n")
main()
```
